```python
import torch

def _softmax(x, axis=-1):
    return torch.softmax(x, dim=axis)
def _gelu(x):
    return torch.nn.functional.gelu(x, approximate="tanh")
def _silu(x):
    return torch.nn.functional.silu(x)
def _sigmoid(x):
    return torch.sigmoid(x)
def _layernorm(x, axis=-1, eps=1e-5):
    m = x.mean(dim=axis, keepdim=True)
    v = x.var(dim=axis, keepdim=True, unbiased=False)
    return (x - m) / torch.sqrt(v + eps)
def _scatter_add(tgt, idx, src, axis=0):
    return tgt.clone().index_add_(axis, idx, src)
def _segment_sum(src, seg, n):
    out = torch.zeros((n,) + src.shape[1:], dtype=src.dtype)
    return out.index_add_(0, seg, src)
def _pad(x, pw):
    flat = tuple(v for pair in reversed(pw) for v in pair)
    return torch.nn.functional.pad(x, flat)

kernel_name = 'sequential_preLN__ssm_conv_s4d__glu_gated_swiglu__prompt'

def setup_inputs():

    _w = (lambda a: (lambda t: t.to(torch.bfloat16) if t.is_floating_point() else t)(torch.as_tensor(a)))
    def _A_setup():
        Bsz, L, D, N = 1, 2048, 640, 128
        return {
            "u": _w((lambda *s: torch.randn(*s, dtype=torch.bfloat16) * 0.05)(Bsz, L, D)),
            "log_A_real": _w((lambda *s: torch.randn(*s, dtype=torch.bfloat16) * 6.4)(D, N) * 0.5),
            "A_imag": _w((lambda *s: torch.randn(*s, dtype=torch.bfloat16) * 0.05)(D, N) * 3.14),
            "C_real": _w((lambda *s: torch.randn(*s, dtype=torch.bfloat16) * 0.05)(D, N) / N ** 0.5),
            "C_imag": _w((lambda *s: torch.randn(*s, dtype=torch.bfloat16) * 0.05)(D, N) / N ** 0.5),
            "log_dt": _w((lambda *s: torch.randn(*s, dtype=torch.bfloat16) * 0.05)(D) * 0.5 - 4.0),
            "D_skip": _w((lambda *s: torch.randn(*s, dtype=torch.bfloat16) * 0.05)(D)),
        }
    _A_in = _A_setup()

    def _B_setup():
        B, S, D, F = 1, 2048, 640, 1728
        return {
            "x": _w((lambda *s: torch.randn(*s, dtype=torch.bfloat16) * 0.05)(B, S, D)),
            "w1": _w((lambda *s: torch.randn(*s, dtype=torch.bfloat16) * 0.4)(D, F) * (2.0 / D) ** 0.5),
            "w3": _w((lambda *s: torch.randn(*s, dtype=torch.bfloat16) * 0.4)(D, F) * (2.0 / D) ** 0.5),
            "w2": _w((lambda *s: torch.randn(*s, dtype=torch.bfloat16) * 0.4)(F, D) * (2.0 / F) ** 0.5),
        }
    _B_in = _B_setup()

    return {
        "A_u": _A_in["u"],
        "A_log_A_real": _A_in["log_A_real"],
        "A_A_imag": _A_in["A_imag"],
        "A_C_real": _A_in["C_real"],
        "A_C_imag": _A_in["C_imag"],
        "A_log_dt": _A_in["log_dt"],
        "A_D_skip": _A_in["D_skip"],
        "B_x": _B_in["x"],
        "B_w1": _B_in["w1"],
        "B_w3": _B_in["w3"],
        "B_w2": _B_in["w2"],
    }

def reference(A_u, A_log_A_real, A_A_imag, A_C_real, A_C_imag, A_log_dt, A_D_skip, B_x, B_w1, B_w3, B_w2):
    def _A_ref(u, log_A_real, A_imag, C_real, C_imag, log_dt, D_skip):
        L = u.shape[1]
        dt = torch.exp(log_dt)
        A = -torch.exp(log_A_real) + 1j * A_imag
        C = (C_real + 1j * C_imag) * dt[:, None]
        pos = (lambda x, dt: x.to(dt))(torch.arange(L), log_dt.dtype)
        P = torch.exp((A * dt[:, None])[:, :, None] * pos[None, None, :])
        K = 2.0 * torch.einsum("dn,dnl->dl", C, P).real
        L2 = 2 * L
        u_t = (lambda x, *d: x.permute(*d))(u, 0, 2, 1)
        Kf = (lambda x, *a, **k: torch.fft.rfft(x.float(), *a, **k))(K, L2)
        Uf = (lambda x, *a, **k: torch.fft.rfft(x.float(), *a, **k))(u_t, L2)
        y = (lambda x, *a, **k: torch.fft.irfft(x, *a, **k).to(torch.bfloat16))(Uf * Kf[None, :, :], L2)[:, :, :L]
        y = (lambda x, *d: x.permute(*d))(y, 0, 2, 1)
        return y + u * D_skip[None, None, :]

    def _B_ref(x, w1, w3, w2):
        gate = torch.einsum("bsd,df->bsf", x, w1)
        up = torch.einsum("bsd,df->bsf", x, w3)
        h = _silu(gate) * up
        out = torch.einsum("bsf,fd->bsd", h, w2)
        return out

    x = A_u
    h = x + _A_ref(_layernorm(x, axis=-1), A_log_A_real, A_A_imag, A_C_real, A_C_imag, A_log_dt, A_D_skip)
    h2 = h + _B_ref(_layernorm(h, axis=-1), B_w1, B_w3, B_w2)
    return h2
```

```python
NAME = "sequential_preLN__ssm_conv_s4d__glu_gated_swiglu__prompt"
REF = "cdna_kernels/%s.s.ref" % NAME

KA_X, KA_LAR, KA_AIM, KA_CRE, KA_CIM, KA_LDT, KA_DSK, KA_BX, KA_W1, KA_W3, KA_W2, KA_OUT, KA_DBG, KA_WS = [8*i for i in range(14)]

class Kern:
    def __init__(self, name, grid, block, lds=0, vgpr=128, agpr=0, sgpr=102):
        self.name, self.grid, self.block, self.lds = name, grid, block, lds
        self.vgpr, self.agpr, self.sgpr = vgpr, agpr, sgpr
        self.L = []
        self.nlab = 0
    def __call__(self, s):
        for line in s.split("\n"):
            line = line.strip()
            if line:
                self.L.append("    " + line if not line.endswith(":") else line)
    def lab(self, base="L"):
        self.nlab += 1
        return f"{self.name}_{base}{self.nlab}"
    def c(self, s):
        self.L.append("    ; " + s)
    def srd(self, d, b, nbytes, off=0):
        if off:
            self(f"s_add_u32 s{d}, s{b}, {off}")
            self(f"s_addc_u32 s{d+1}, s{b+1}, 0")
        else:
            if d != b:
                self(f"s_mov_b32 s{d}, s{b}")
                self(f"s_mov_b32 s{d+1}, s{b+1}")
        self(f"s_mov_b32 s{d+2}, {nbytes}")
        self(f"s_mov_b32 s{d+3}, 0x00020000")
    def text(self):
        o = [f".globl {self.name}", ".p2align 8", f".type {self.name},@function", f"{self.name}:"]
        o += self.L
        return "\n".join(o) + "\n"
    def desc(self):
        acc = (self.vgpr + 3) // 4 * 4
        nfv = acc + self.agpr if self.agpr else self.vgpr
        return f""".p2align 6
.amdhsa_kernel {self.name}
  .amdhsa_next_free_vgpr {nfv}
  .amdhsa_next_free_sgpr {self.sgpr}
  .amdhsa_accum_offset {acc}
  .amdhsa_group_segment_fixed_size 0
  .amdhsa_kernarg_size 112
  .amdhsa_user_sgpr_count 2
  .amdhsa_user_sgpr_kernarg_segment_ptr 1
  .amdhsa_system_sgpr_workgroup_id_x 1
.end_amdhsa_kernel
"""

def build_file(launches, path):
    hdr = [l for l in open(REF).read().split("\n") if l.startswith("; Kernarg") or l.startswith(";   offset")]
    out = list(hdr)
    for k in launches:
        out.append(f"; @launch kernel={k.name} grid=({k.grid},1,1) block=({k.block},1,1) lds={k.lds}")
    out.append('.amdgcn_target "amdgcn-amd-amdhsa--gfx950"')
    out.append(".text")
    seen = []
    for k in launches:
        if k not in seen:
            seen.append(k)
    for k in seen:
        out.append(k.text())
    out.append('.section .rodata,"a"')
    for k in seen:
        out.append(k.desc())
    open(path, "w").write("\n".join(out))
```

```python
from asmlib import *
WS_U, WS_KF, WS_H, WS_Z, WS_HM = 0, 4<<20, 12<<20, 16<<20, 20<<20
XB = 2048*640*2

def wave_sum(k, v, s):
    for sh in (1, 2, 4, 8):
        k("s_nop 1")
        k(f"v_add_f32_dpp v{v}, v{v}, v{v} row_shr:{sh} row_mask:0xf bank_mask:0xf bound_ctrl:0")
    k("s_nop 1")
    k(f"v_add_f32_dpp v{v}, v{v}, v{v} row_bcast:15 row_mask:0xa bank_mask:0xf")
    k("s_nop 1")
    k(f"v_add_f32_dpp v{v}, v{v}, v{v} row_bcast:31 row_mask:0xc bank_mask:0xf")
    k("s_nop 1")
    k(f"v_readlane_b32 s{s}, v{v}, 63")
    k("s_nop 3")

def rbf(k, v, t=None):
    k(f"v_cvt_pk_bf16_f32 v{v}, v{v}, v{v}")
    k(f"v_and_b32 v{v}, 0xffff0000, v{v}")

def ln_kernel(name, src_ka, src_off, dst_off):
    k = Kern(name, 512, 256, 0, vgpr=40)
    end = k.lab("end")
    k(f"s_cmp_ge_u32 s2, 512")
    k(f"s_cbranch_scc1 {end}")
    k(f"s_load_dwordx2 s[4:5], s[0:1], {src_ka}")
    k(f"s_load_dwordx2 s[6:7], s[0:1], {KA_WS}")
    k("s_waitcnt lgkmcnt(0)")
    k.srd(8, 4, XB, src_off)
    k.srd(12, 6, XB, dst_off)
    k("v_lshrrev_b32 v1, 6, v0")
    k("v_and_b32 v2, 63, v0")
    k("s_lshl_b32 s3, s2, 2")
    k("v_add_u32 v1, s3, v1")
    k("v_mul_u32_u24 v1, 1280, v1")
    k("v_lshl_add_u32 v1, v2, 2, v1")
    for i in range(5):
        k(f"buffer_load_dword v{4+i}, v1, s[8:11], 0 offen offset:{256*i}")
    k("s_waitcnt vmcnt(0)")
    for i in range(5):
        k(f"v_lshlrev_b32 v{10+2*i}, 16, v{4+i}")
        k(f"v_and_b32 v{11+2*i}, 0xffff0000, v{4+i}")
    k("v_add_f32 v20, v10, v11")
    for i in range(2, 10):
        k(f"v_add_f32 v20, v20, v{10+i}")
    wave_sum(k, 20, 16)
    k("s_mov_b32 s17, 0x3acccccd")
    k("v_mov_b32 v21, s16")
    k("v_mul_f32 v21, s17, v21")
    k("v_mov_b32 v20, 0")
    for i in range(10):
        k(f"v_sub_f32 v22, v{10+i}, v21")
        k(f"v_fmac_f32 v20, v22, v22")
    wave_sum(k, 20, 16)
    k("v_mov_b32 v22, s16")
    k("v_mul_f32 v22, s17, v22")
    rbf(k, 22)
    k("v_add_f32 v22, 0x3727c5ac, v22")
    rbf(k, 22)
    k("v_sqrt_f32 v22, v22")
    k("s_nop 0")
    rbf(k, 22)
    k("v_rcp_f32 v22, v22")
    rbf(k, 21)
    for i in range(10):
        k(f"v_sub_f32 v{10+i}, v{10+i}, v21")
        rbf(k, 10+i)
        k(f"v_mul_f32 v{10+i}, v{10+i}, v22")
    for i in range(5):
        k(f"v_cvt_pk_bf16_f32 v{4+i}, v{10+2*i}, v{11+2*i}")
        k(f"buffer_store_dword v{4+i}, v1, s[12:15], 0 offen offset:{256*i}")
    k("s_waitcnt vmcnt(0)")
    k(f"{end}:")
    k("s_endpgm")
    return k

def kgen_kernel():
    k = Kern("kgen_kernel", 5120, 256, 2048, vgpr=40)
    end = k.lab("end")
    k(f"s_cmp_ge_u32 s2, 5120")
    k(f"s_cbranch_scc1 {end}")
    k(f"s_load_dwordx8 s[4:11], s[0:1], {KA_LAR}")
    k(f"s_load_dwordx2 s[12:13], s[0:1], {KA_LDT}")
    k(f"s_load_dwordx2 s[14:15], s[0:1], {KA_WS}")
    k("s_waitcnt lgkmcnt(0)")
    k.srd(16, 4, 640*128*2)
    k.srd(20, 6, 640*128*2)
    k.srd(24, 8, 640*128*2)
    k.srd(28, 10, 640*128*2)
    k.srd(32, 12, 640*2)
    k.srd(36, 14, 640*2048*4, WS_KF)
    k("s_lshr_b32 s40, s2, 3")
    k("s_and_b32 s41, s2, 7")
    k("v_and_b32 v1, 127, v0")
    k("s_lshl_b32 s42, s40, 8")
    k("v_lshlrev_b32 v2, 1, v1")
    k("v_add_u32 v2, s42, v2")
    k("s_lshl_b32 s43, s40, 1")
    k("v_mov_b32 v3, s43")
    k("buffer_load_ushort v4, v2, s[16:19], 0 offen")
    k("buffer_load_ushort v5, v2, s[20:23], 0 offen")
    k("buffer_load_ushort v6, v2, s[24:27], 0 offen")
    k("buffer_load_ushort v7, v2, s[28:31], 0 offen")
    k("buffer_load_ushort v8, v3, s[32:35], 0 offen")
    k("s_waitcnt vmcnt(0)")
    for r in range(4, 9):
        k(f"v_lshlrev_b32 v{r}, 16, v{r}")
    k("s_mov_b32 s44, 0x3fb8aa3b")
    k("v_mul_f32 v4, s44, v4")
    k("v_exp_f32 v4, v4")
    k("v_mul_f32 v8, s44, v8")
    k("v_exp_f32 v8, v8")
    k("s_nop 0")
    rbf(k, 4)
    rbf(k, 8)
    k("v_mul_f32 v4, v4, v8")
    k("v_sub_f32 v4, 0, v4")
    k("v_mul_f32 v5, v5, v8")
    k("v_mul_f32 v6, v6, v8")
    k("v_mul_f32 v7, v7, v8")
    k("v_lshlrev_b32 v9, 4, v1")
    k("ds_write_b128 v9, v[4:7]")
    k("s_waitcnt lgkmcnt(0)")
    k("s_barrier")
    k("s_lshl_b32 s45, s41, 8")
    k("v_add_u32 v10, s45, v0")
    k("v_cvt_f32_u32 v11, v10")
    rbf(k, 11)
    k("v_mov_b32 v12, 0")
    k("v_mov_b32 v13, 0")
    k("s_mov_b32 s46, 0")
    lp = k.lab("loop")
    k(f"{lp}:")
    k("ds_read_b128 v[16:19], v13")
    k("s_waitcnt lgkmcnt(0)")
    k("v_mul_f32 v20, v16, v11")
    k("v_mul_f32 v21, v17, v11")
    k("v_mul_f32 v20, s44, v20")
    k("v_exp_f32 v20, v20")
    k("v_mul_f32 v21, 0.15915494, v21")
    k("v_fract_f32 v21, v21")
    k("v_sin_f32 v22, v21")
    k("v_cos_f32 v23, v21")
    k("s_nop 0")
    k("v_mul_f32 v23, v23, v18")
    k("v_fma_f32 v23, -v22, v19, v23")
    k("v_fmac_f32 v12, v20, v23")
    k("v_add_u32 v13, 16, v13")
    k("s_add_u32 s46, s46, 1")
    k("s_cmp_lt_u32 s46, 128")
    k(f"s_cbranch_scc1 {lp}")
    k("v_add_f32 v12, v12, v12")
    k("s_lshl_b32 s47, s40, 13")
    k("v_lshlrev_b32 v10, 2, v10")
    k("v_add_u32 v10, s47, v10")
    k("buffer_store_dword v12, v10, s[36:39], 0 offen")
    k("s_waitcnt vmcnt(0)")
    k(f"{end}:")
    k("s_endpgm")
    return k

def conv_kernel():
    k = Kern("conv_kernel", 5120, 256, 8192+16384, vgpr=40)
    end = k.lab("end")
    k(f"s_cmp_ge_u32 s2, 5120")
    k(f"s_cbranch_scc1 {end}")
    k(f"s_load_dwordx2 s[4:5], s[0:1], {KA_X}")
    k(f"s_load_dwordx2 s[6:7], s[0:1], {KA_DSK}")
    k(f"s_load_dwordx2 s[8:9], s[0:1], {KA_WS}")
    k("s_waitcnt lgkmcnt(0)")
    k.srd(12, 4, XB)
    k.srd(16, 6, 1280)
    k.srd(20, 8, XB, WS_U)
    k.srd(24, 8, 640*2048*4, WS_KF)
    k.srd(28, 8, XB, WS_H)
    k("s_lshr_b32 s40, s2, 3")
    k("s_and_b32 s41, s2, 7")
    k("s_lshl_b32 s42, s40, 13")
    k("v_lshlrev_b32 v1, 2, v0")
    k("v_add_u32 v2, s42, v1")
    for i in range(8):
        k(f"buffer_load_dword v{8+i}, v2, s[24:27], 0 offen offset:{1024*(i%4)}")
        if i == 3: k("v_add_u32 v2, 4096, v2")
    k("v_mul_u32_u24 v3, 1280, v0")
    k("s_lshl_b32 s43, s40, 1")
    k("v_add_u32 v3, s43, v3")
    for i in range(8):
        k(f"buffer_load_ushort v{16+i}, v3, s[20:23], 0 offen")
        k(f"v_add_u32 v3, {1280*256}, v3")
    k("s_waitcnt vmcnt(0)")
    k("v_mov_b32 v4, 0")
    for i in range(8):
        k(f"ds_write_b32 v1, v{8+i} offset:{1024*i}")
        k(f"ds_write_b32 v1, v4 offset:{8192+1024*i}")
        k(f"v_lshlrev_b32 v{16+i}, 16, v{16+i}")
        k(f"ds_write_b32 v1, v{16+i} offset:{16384+1024*i}")
    k("s_waitcnt lgkmcnt(0)")
    k("s_barrier")
    k("s_lshl_b32 s44, s41, 8")
    k("v_add_u32 v5, s44, v0")
    k("v_lshlrev_b32 v6, 2, v5")
    k("v_add_u32 v6, 16384-12, v6")
    k("v_mov_b32 v7, 0")
    k("v_mov_b32 v24, 0")
    k("s_add_u32 s45, s44, 256")
    k("s_mov_b32 s46, 0")
    lp = k.lab("loop")
    k(f"{lp}:")
    k("ds_read_b128 v[8:11], v7")
    for j in range(4):
        k(f"ds_read_b32 v{12+j}, v6 offset:{12-4*j}")
    k("s_waitcnt lgkmcnt(0)")
    for j in range(4):
        k(f"v_fmac_f32 v24, v{8+j}, v{12+j}")
    k("v_add_u32 v7, 16, v7")
    k("v_subrev_u32 v6, 16, v6")
    k("s_add_u32 s46, s46, 4")
    k("s_cmp_lt_u32 s46, s45")
    k(f"s_cbranch_scc1 {lp}")
    k("v_lshlrev_b32 v6, 2, v5")
    k("ds_read_b32 v12, v6 offset:16384")
    k("v_mul_u32_u24 v3, 1280, v5")
    k("v_add_u32 v3, s43, v3")
    k("buffer_load_ushort v13, v3, s[12:15], 0 offen")
    k("v_mov_b32 v14, s43")
    k("buffer_load_ushort v14, v14, s[16:19], 0 offen")
    k("s_waitcnt vmcnt(0) lgkmcnt(0)")
    k("v_lshlrev_b32 v13, 16, v13")
    k("v_lshlrev_b32 v14, 16, v14")
    rbf(k, 24)
    k("v_mul_f32 v12, v12, v14")
    rbf(k, 12)
    k("v_add_f32 v24, v24, v12")
    rbf(k, 24)
    k("v_add_f32 v24, v24, v13")
    k("v_cvt_pk_bf16_f32 v24, v24, v24")
    k("buffer_store_short v24, v3, s[28:31], 0 offen")
    k("s_waitcnt vmcnt(0)")
    k(f"{end}:")
    k("s_endpgm")
    return k

def load_rows_lds(k, srd, rowbytes, nthreads, R):
    nd = rowbytes // 4
    per = (nd + nthreads - 1) // nthreads
    for r in range(R):
        for j in range(per):
            k(f"v_add_u32 v2, {j*nthreads}, v0")
            k(f"v_cmp_gt_u32 vcc, {nd}, v2")
            k("s_nop 1")
            k("s_and_saveexec_b64 s[50:51], vcc")
            k(f"v_lshlrev_b32 v3, 2, v2")
            k(f"v_add_u32 v3, {r*rowbytes}, v3")
            k(f"buffer_load_dword v4, v3, s[{srd}:{srd+3}], s40 offen")
            k("s_waitcnt vmcnt(0)")
            k("v_lshlrev_b32 v6, 16, v4")
            k("v_and_b32 v7, 0xffff0000, v4")
            k(f"v_lshlrev_b32 v3, 3, v2")
            k(f"v_add_u32 v3, {r*rowbytes*2}, v3")
            k("ds_write_b64 v3, v[6:7]")
            k("s_mov_b64 exec, s[50:51]")
    k("s_waitcnt lgkmcnt(0)")
    k("s_barrier")

def gemm1_kernel():
    R = 8
    k = Kern("gemm1_kernel", 256*9, 192, R*640*4, vgpr=80)
    end = k.lab("end")
    k(f"s_cmp_ge_u32 s2, {256*9}")
    k(f"s_cbranch_scc1 {end}")
    k(f"s_load_dwordx4 s[4:7], s[0:1], {KA_W1}")
    k(f"s_load_dwordx2 s[8:9], s[0:1], {KA_WS}")
    k("s_waitcnt lgkmcnt(0)")
    k.srd(12, 4, 640*1728*2)
    k.srd(16, 6, 640*1728*2)
    k.srd(20, 8, XB, WS_Z)
    k.srd(24, 8, 2048*1728*2, WS_HM)
    k("s_and_b32 s41, s2, 255")
    k("s_lshr_b32 s42, s2, 8")
    k(f"s_mul_i32 s40, s41, {R*1280}")
    load_rows_lds(k, 20, 1280, 192, R)
    k("s_mul_i32 s43, s42, 192")
    k("v_add_u32 v1, s43, v0")
    k("v_lshlrev_b32 v2, 1, v1")
    k("v_mov_b32 v3, 0")
    for i in range(2*R):
        k(f"v_mov_b32 v{16+i}, 0")
    k("s_mov_b32 s46, 0")
    lp = k.lab("loop")
    k(f"{lp}:")
    for j in range(4):
        k(f"buffer_load_ushort v{4+j}, v2, s[12:15], 0 offen")
        k(f"buffer_load_ushort v{8+j}, v2, s[16:19], 0 offen")
        k(f"v_add_u32 v2, 3456, v2")
    for r in range(R):
        k(f"ds_read_b128 v[{32+4*r}:{35+4*r}], v3 offset:{r*2560}")
    k("s_waitcnt vmcnt(0) lgkmcnt(0)")
    for j in range(8):
        k(f"v_lshlrev_b32 v{4+j}, 16, v{4+j}")
    for r in range(R):
        for j in range(4):
            k(f"v_fmac_f32 v{16+r}, v{32+4*r+j}, v{4+j}")
            k(f"v_fmac_f32 v{16+R+r}, v{32+4*r+j}, v{8+j}")
    k("v_add_u32 v3, 16, v3")
    k("s_add_u32 s46, s46, 4")
    k("s_cmp_lt_u32 s46, 640")
    k(f"s_cbranch_scc1 {lp}")
    k(f"s_mul_i32 s44, s41, {R*3456}")
    k("v_lshlrev_b32 v2, 1, v1")
    k("v_add_u32 v2, s44, v2")
    k("s_mov_b32 s45, 0xbfb8aa3b")
    for r in range(R):
        g, u = 16+r, 16+R+r
        rbf(k, g); rbf(k, u)
        k(f"v_mul_f32 v4, s45, v{g}")
        k(f"v_exp_f32 v4, v4")
        k("s_nop 0")
        k(f"v_add_f32 v4, 1.0, v4")
        k(f"v_rcp_f32 v4, v4")
        k("s_nop 0")
        k(f"v_mul_f32 v4, v4, v{g}")
        rbf(k, 4)
        k(f"v_mul_f32 v4, v4, v{u}")
        k("v_cvt_pk_bf16_f32 v4, v4, v4")
        k(f"buffer_store_short v4, v2, s[24:27], 0 offen")
        k("v_add_u32 v2, 3456, v2")
    k("s_waitcnt vmcnt(0)")
    k(f"{end}:")
    k("s_endpgm")
    return k

def gemm2_kernel():
    R = 8
    k = Kern("gemm2_kernel", 512, 320, R*1728*4, vgpr=80)
    end = k.lab("end")
    k(f"s_cmp_ge_u32 s2, 512")
    k(f"s_cbranch_scc1 {end}")
    k(f"s_load_dwordx4 s[4:7], s[0:1], {KA_W2}")
    k(f"s_load_dwordx2 s[8:9], s[0:1], {KA_WS}")
    k("s_waitcnt lgkmcnt(0)")
    k.srd(12, 4, 640*1728*2)
    k.srd(16, 6, XB)
    k.srd(20, 8, 2048*1728*2, WS_HM)
    k.srd(24, 8, XB, WS_H)
    k("s_and_b32 s41, s2, 255")
    k("s_lshr_b32 s42, s2, 8")
    k(f"s_mul_i32 s40, s41, {R*3456}")
    load_rows_lds(k, 20, 3456, 320, R)
    k("s_mul_i32 s43, s42, 320")
    k("v_add_u32 v1, s43, v0")
    k("v_lshlrev_b32 v2, 1, v1")
    k("v_mov_b32 v3, 0")
    for i in range(R):
        k(f"v_mov_b32 v{16+i}, 0")
    k("s_mov_b32 s46, 0")
    lp = k.lab("loop")
    k(f"{lp}:")
    for j in range(4):
        k(f"buffer_load_ushort v{4+j}, v2, s[12:15], 0 offen")
        k(f"v_add_u32 v2, 1280, v2")
    for r in range(R):
        k(f"ds_read_b128 v[{32+4*r}:{35+4*r}], v3 offset:{r*6912}")
    k("s_waitcnt vmcnt(0) lgkmcnt(0)")
    for j in range(4):
        k(f"v_lshlrev_b32 v{4+j}, 16, v{4+j}")
    for r in range(R):
        for j in range(4):
            k(f"v_fmac_f32 v{16+r}, v{32+4*r+j}, v{4+j}")
    k("v_add_u32 v3, 16, v3")
    k("s_add_u32 s46, s46, 4")
    k("s_cmp_lt_u32 s46, 1728")
    k(f"s_cbranch_scc1 {lp}")
    k(f"s_mul_i32 s44, s41, {R*1280}")
    k("v_lshlrev_b32 v2, 1, v1")
    k("v_add_u32 v2, s44, v2")
    for r in range(R):
        k(f"buffer_load_ushort v4, v2, s[24:27], 0 offen")
        rbf(k, 16+r)
        k("s_waitcnt vmcnt(0)")
        k("v_lshlrev_b32 v4, 16, v4")
        k(f"v_add_f32 v4, v4, v{16+r}")
        k("v_cvt_pk_bf16_f32 v4, v4, v4")
        k(f"buffer_store_short v4, v2, s[16:19], 0 offen")
        k("v_add_u32 v2, 1280, v2")
    k("s_waitcnt vmcnt(0)")
    k(f"{end}:")
    k("s_endpgm")
    return k

def empty_kernel(name="empty_kernel", grid=256):
    k = Kern(name, grid, 256, 0, vgpr=8)
    k("s_endpgm")
    return k

if __name__ == "__main__":
    import sys
    nempty = int(sys.argv[1]) if len(sys.argv) > 1 else 0
    out = sys.argv[2] if len(sys.argv) > 2 else "cdna_kernels/%s.s" % NAME
    e = empty_kernel()
    L = [ln_kernel("ln1_kernel", KA_X, 0, WS_U), kgen_kernel(), conv_kernel(),
         ln_kernel("ln2_kernel", KA_WS, WS_H, WS_Z), gemm1_kernel(), gemm2_kernel()] + [e]*nempty
    build_file(L, out)
```

```python
NAME = "sequential_preLN__ssm_conv_s4d__glu_gated_swiglu__prompt"
REF = "cdna_kernels/%s.s.ref" % NAME

KA_X, KA_LAR, KA_AIM, KA_CRE, KA_CIM, KA_LDT, KA_DSK, KA_BX, KA_W1, KA_W3, KA_W2, KA_OUT, KA_DBG, KA_WS = [8*i for i in range(14)]

class Kern:
    def __init__(self, name, grid, block, lds=0, vgpr=128, agpr=0, sgpr=102):
        self.name, self.grid, self.block, self.lds = name, grid, block, lds
        self.vgpr, self.agpr, self.sgpr = vgpr, agpr, sgpr
        self.L = []
        self.nlab = 0
    def __call__(self, s):
        for line in s.split("\n"):
            line = line.strip()
            if line:
                self.L.append("    " + line if not line.endswith(":") else line)
    def lab(self, base="L"):
        self.nlab += 1
        return f"{self.name}_{base}{self.nlab}"
    def c(self, s):
        self.L.append("    ; " + s)
    def srd(self, d, b, nbytes, off=0):
        if off:
            self(f"s_add_u32 s{d}, s{b}, {off}")
            self(f"s_addc_u32 s{d+1}, s{b+1}, 0")
        else:
            if d != b:
                self(f"s_mov_b32 s{d}, s{b}")
                self(f"s_mov_b32 s{d+1}, s{b+1}")
        self(f"s_mov_b32 s{d+2}, {nbytes}")
        self(f"s_mov_b32 s{d+3}, 0x00020000")
    def text(self):
        o = [f".globl {self.name}", ".p2align 8", f".type {self.name},@function", f"{self.name}:"]
        o += self.L
        return "\n".join(o) + "\n"
    def desc(self):
        acc = (self.vgpr + 3) // 4 * 4
        nfv = acc + self.agpr if self.agpr else self.vgpr
        return f""".p2align 6
.amdhsa_kernel {self.name}
  .amdhsa_next_free_vgpr {nfv}
  .amdhsa_next_free_sgpr {self.sgpr}
  .amdhsa_accum_offset {acc}
  .amdhsa_group_segment_fixed_size 0
  .amdhsa_kernarg_size 112
  .amdhsa_user_sgpr_count 2
  .amdhsa_user_sgpr_kernarg_segment_ptr 1
  .amdhsa_system_sgpr_workgroup_id_x 1
.end_amdhsa_kernel
"""

def build_file(launches, path):
    hdr = [l for l in open(REF).read().split("\n") if l.startswith("; Kernarg") or l.startswith(";   offset")]
    out = list(hdr)
    for k in launches:
        out.append(f"; @launch kernel={k.name} grid=({k.grid},1,1) block=({k.block},1,1) lds={k.lds}")
    out.append('.amdgcn_target "amdgcn-amd-amdhsa--gfx950"')
    out.append(".text")
    seen = []
    for k in launches:
        if k not in seen:
            seen.append(k)
    for k in seen:
        out.append(k.text())
    out.append('.section .rodata,"a"')
    for k in seen:
        out.append(k.desc())
    open(path, "w").write("\n".join(out))

class Cnt:
    def __init__(self, k, name, maxv):
        self.k, self.name, self.maxv = k, name, maxv
        self.n = 0
        self.done = 0
    def issue(self):
        self.n += 1
        return self.n
    def wait(self, tag):
        if tag <= self.done:
            return
        left = self.n - tag
        assert left >= 0
        left = min(left, self.maxv)
        self.k(f"s_waitcnt {self.name}({left})")
        self.done = self.n - left
    def wait_all(self):
        self.wait(self.n)

def vr(b, n):
    return f"v[{b}:{b+n-1}]" if n > 1 else f"v{b}"

def merge(main, side, start=0, end=None):
    end = len(main) if end is None else end
    ng = end - start
    out = [list(g) for g in main]
    for i, s in enumerate(side):
        out[start + (i * ng) // len(side)].append(s)
    return out
```

```python
from asmlib import *
from naive import wave_sum, rbf, WS_H, XB
WS_HT, WS_ST2, WS_HM, WS_W2T = 16<<20, 19<<20, 20<<20, 28<<20
HT_B, ST2_B, HM_B, W_B = 2621440, 2048*16, 7077888, 2211840
LOG2E = 0x3fb8aa3b

def mfma32(d, a, b, c):
    cs = c if isinstance(c, str) else vr(c, 16)
    return f"v_mfma_f32_32x32x16_bf16 {vr(d,16)}, {vr(a,4)}, {vr(b,4)}, {cs}"
def mfma16(d, a, b, c):
    cs = c if isinstance(c, str) else vr(c, 4)
    return f"v_mfma_f32_16x16x32_bf16 {vr(d,4)}, {vr(a,4)}, {vr(b,4)}, {cs}"

def emit(k, items):
    for it in items:
        if callable(it): it()
        else: k(it)

def prep2_kernel():
    k = Kern("prep2_kernel", 512, 256, 0, vgpr=40)
    end = k.lab("end")
    k("s_cmp_ge_u32 s2, 512")
    k(f"s_cbranch_scc1 {end}")
    k(f"s_load_dwordx2 s[6:7], s[0:1], {KA_WS}")
    k("s_waitcnt lgkmcnt(0)")
    k.srd(8, 6, XB, WS_H)
    k.srd(12, 6, HT_B, WS_HT)
    k.srd(20, 6, ST2_B, WS_ST2)
    k("v_lshrrev_b32 v1, 6, v0")
    k("v_and_b32 v2, 63, v0")
    k("s_lshl_b32 s3, s2, 2")
    k("v_add_u32 v3, s3, v1")
    k("v_mul_u32_u24 v1, 1280, v3")
    k("v_lshl_add_u32 v1, v2, 2, v1")
    for i in range(5):
        k(f"buffer_load_dword v{4+i}, v1, s[8:11], 0 offen offset:{256*i}")
    k("s_waitcnt vmcnt(0)")
    k("v_lshrrev_b32 v24, 5, v3")
    k("v_mul_u32_u24 v24, 40960, v24")
    k("v_and_b32 v25, 31, v3")
    k("v_lshl_add_u32 v24, v25, 1, v24")
    k("v_lshl_add_u32 v24, v2, 7, v24")
    for i in range(5):
        k(f"buffer_store_short v{4+i}, v24, s[12:15], 0 offen")
        k(f"buffer_store_short_d16_hi v{4+i}, v24, s[12:15], 0 offen offset:64")
        k(f"v_add_u32 v24, {128*64}, v24")
    for i in range(5):
        k(f"v_lshlrev_b32 v{10+2*i}, 16, v{4+i}")
        k(f"v_and_b32 v{11+2*i}, 0xffff0000, v{4+i}")
    k("v_add_f32 v20, v10, v11")
    for i in range(2, 10):
        k(f"v_add_f32 v20, v20, v{10+i}")
    wave_sum(k, 20, 16)
    k("s_mov_b32 s17, 0x3acccccd")
    k("v_mov_b32 v21, s16")
    k("v_mul_f32 v21, s17, v21")
    k("v_mov_b32 v20, 0")
    for i in range(10):
        k(f"v_sub_f32 v22, v{10+i}, v21")
        k(f"v_fmac_f32 v20, v22, v22")
    wave_sum(k, 20, 16)
    k("v_mov_b32 v22, s16")
    k("v_mul_f32 v22, s17, v22")
    rbf(k, 22)
    k("v_add_f32 v22, 0x3727c5ac, v22")
    rbf(k, 22)
    k("v_sqrt_f32 v22, v22")
    k("s_nop 0")
    rbf(k, 22)
    rbf(k, 21)
    k("v_rcp_f32 v29, v22")
    k("v_sub_f32 v28, 0, v21")
    k("v_cvt_pk_bf16_f32 v28, v28, v28")
    k(f"v_mul_f32 v29, {LOG2E | 0x80000000}, v29")
    k("v_mul_f32 v30, v22, v22")
    k("v_mov_b32 v31, 0")
    k("v_and_b32 v29, 0xffffff7f, v29")
    k("v_and_b32 v30, 0xffffff7f, v30")
    k("v_lshlrev_b32 v3, 4, v3")
    k("v_cmp_eq_u32 vcc, 0, v2")
    k("s_nop 1")
    k("s_and_saveexec_b64 s[50:51], vcc")
    k("buffer_store_dwordx4 v[28:31], v3, s[20:23], 0 offen")
    k("s_waitcnt vmcnt(0)")
    k(f"{end}:")
    k("s_endpgm")
    return k

W0, ACC0, ACC1, AEXT, BF = 96, 64, 80, 60, 28
V_LANE, V_WA, V_B0, V_B1, V_ST, V_SA, V_SR, V_STAT, V_PK, V_E = 2, 3, 4, 5, 6, 7, 8, 24, 20, 18
ST_LDS = 81920

def cost(it):
    if callable(it): return 4
    op = it.split()[0]
    if op in ("v_exp_f32", "v_rcp_f32", "v_log_f32", "v_sin_f32", "v_cos_f32", "v_sqrt_f32", "v_rsq_f32"): return 8
    return 4

def g1_epilogue(acc, s_off):
    side = []
    c1, s2 = V_STAT+1, V_STAT+2
    for q, j in enumerate((0, 2, 8, 10)):
        g0, g1, u0, u1 = acc+j, acc+j+1, acc+j+4, acc+j+5
        e0, e1 = V_E, V_E+1
        side += [f"v_mul_f32 v{e0}, v{g0}, v{c1}", f"v_mul_f32 v{e1}, v{g1}, v{c1}",
                 f"v_exp_f32 v{e0}, v{e0}", f"v_mul_f32 v{g0}, v{g0}, v{u0}",
                 f"v_exp_f32 v{e1}, v{e1}", f"v_mul_f32 v{g1}, v{g1}, v{u1}",
                 f"v_fma_f32 v{e0}, v{e0}, v{s2}, v{s2}", f"v_fma_f32 v{e1}, v{e1}, v{s2}, v{s2}",
                 f"v_rcp_f32 v{e0}, v{e0}", f"v_rcp_f32 v{e1}, v{e1}",
                 f"v_mul_f32 v{g0}, v{g0}, v{e0}", f"v_mul_f32 v{g1}, v{g1}, v{e1}",
                 f"v_cvt_pk_bf16_f32 v{V_PK+q}, v{g0}, v{g1}"]
    side.append(f"buffer_store_dwordx4 {vr(V_PK,4)}, v{V_SA}, s[40:43], s{s_off} offen sc1")
    return side

def g1_kernel(stamp=False, prio=2, noepi=False, NB=8, WG=4, nodma=False, bud=(8, 12), extat=1):
    PD = NB
    k = Kern("g1_kernel", 256, 512, 163840, vgpr=256)
    end, helper = k.lab("end"), k.lab("helper")
    k("s_cmp_ge_u32 s2, 256")
    k(f"s_cbranch_scc1 {end}")
    k("s_lshr_b32 s33, s2, 5")
    k("s_bfe_u32 s32, s2, 0x20001")
    k("s_mul_i32 s32, s32, 7")
    k("s_add_u32 s32, s32, s33")
    k("s_cmp_ge_u32 s33, 7")
    k(f"s_cbranch_scc1 {end}")
    k("s_cmp_ge_u32 s32, 27")
    k(f"s_cbranch_scc1 {end}")
    if stamp: k("s_memtime s[60:61]")
    k(f"s_load_dwordx4 s[4:7], s[0:1], {KA_W1}")
    k(f"s_load_dwordx4 s[8:11], s[0:1], {KA_DBG}")
    k("v_lshrrev_b32 v1, 6, v0")
    k(f"v_and_b32 v{V_LANE}, 63, v0")
    k("v_readfirstlane_b32 s30, v1")
    k("s_and_b32 s31, s2, 1")
    k("s_lshl_b32 s31, s31, 2")
    k("s_bfe_u32 s33, s2, 0x20003")
    k("s_add_u32 s31, s31, s33")
    k("v_lshrrev_b32 v9, 3, v2")
    k("v_mul_u32_u24 v10, 3456, v9")
    k("v_bfe_u32 v9, v2, 1, 2")
    k("v_bfe_u32 v11, v2, 4, 1")
    k("v_xor_b32 v9, v9, v11")
    k("v_lshl_add_u32 v10, v9, 5, v10")
    k("v_and_b32 v9, 1, v2")
    k("v_lshl_add_u32 v10, v9, 4, v10")
    k("v_xor_b32 v11, 64, v10")
    k(f"s_mul_i32 s33, s30, {40*3456}")
    k("s_lshl_b32 s35, s32, 7")
    k("s_add_u32 s33, s33, s35")
    k("s_mul_i32 s34, s30, 5120")
    k("s_waitcnt lgkmcnt(0)")
    k.srd(12, 4, W_B)
    k.srd(16, 6, W_B)
    for hh in range(2):
        for m in range(2):
            for q in range(5):
                k(f"s_add_u32 m0, s34, {hh*81920 + m*40960 + q*1024}")
                k(f"s_add_u32 s35, s33, {(320*hh + 8*q)*3456}")
                k(f"buffer_load_dwordx4 v{10+m}, s[{12+4*m}:{15+4*m}], s35 offen lds")
    k.srd(20, 10, HT_B, WS_HT)
    k.srd(24, 10, ST2_B, WS_ST2)
    k.srd(40, 10, HM_B, WS_HM)
    k("s_cmp_ge_u32 s30, 4")
    k(f"s_cbranch_scc1 {helper}")
    k(f"s_setprio {prio}")
    lg = Cnt(k, "lgkmcnt", 15)
    k("v_bfe_u32 v11, v2, 4, 1")
    k("v_and_b32 v14, 31, v2")
    k(f"v_lshlrev_b32 v{V_ST}, 4, v14")
    k(f"v_add_u32 v{V_ST}, {ST_LDS-512}, v{V_ST}")
    k(f"v_mul_u32_u24 v{V_SR}, 55296, v11")
    k("v_lshrrev_b32 v14, 5, v2")
    k(f"v_lshl_add_u32 v{V_SR}, v14, 8, v{V_SR}")
    k("v_and_b32 v14, 15, v2")
    k(f"v_lshl_add_u32 v{V_SR}, v14, 4, v{V_SR}")
    k("s_and_b32 s35, s30, 1")
    k("s_lshl_b32 s35, s35, 9")
    k(f"v_add_u32 v{V_SR}, s35, v{V_SR}")
    k(f"v_mov_b32 v{V_SA}, 0x7ff00000")
    k(f"s_mul_i32 s36, s31, {4*110592}")
    k("s_lshl_b32 s35, s32, 1")
    k("s_lshr_b32 s37, s30, 1")
    k("s_add_u32 s35, s35, s37")
    k("s_lshl_b32 s35, s35, 10")
    k("s_add_u32 s38, s36, s35")
    k("s_mov_b32 s39, 110592")
    k("s_mov_b32 s36, 0")
    k("v_bfe_u32 v9, v2, 2, 2")
    k("v_lshrrev_b32 v10, 5, v2")
    k("v_lshl_add_u32 v10, v10, 3, v9")
    k("v_and_b32 v12, 3, v2")
    k(f"v_lshlrev_b32 v{V_B0}, 6, v10")
    k(f"v_lshl_add_u32 v{V_B0}, v11, 5, v{V_B0}")
    k(f"v_lshl_add_u32 v{V_B0}, v12, 3, v{V_B0}")
    k(f"v_add_u32 v{V_B1}, 40960, v{V_B0}")
    k("v_lshrrev_b32 v13, 1, v12")
    k(f"v_mul_u32_u24 v{V_WA}, 40960, v13")
    k(f"v_lshl_add_u32 v{V_WA}, v10, 7, v{V_WA}")
    k(f"v_lshl_add_u32 v{V_WA}, v11, 4, v{V_WA}")
    k("v_lshrrev_b32 v14, 1, v9")
    k("v_lshl_add_u32 v14, v13, 1, v14")
    k("v_xor_b32 v14, s30, v14")
    k(f"v_lshl_add_u32 v{V_WA}, v14, 5, v{V_WA}")
    k("v_and_b32 v14, 1, v12")
    k(f"v_lshl_add_u32 v{V_WA}, v14, 3, v{V_WA}")
    for i in range(4): k(f"v_mov_b32 v{V_STAT+i}, 0x3f803f80")
    for i in range(4): k(f"v_mov_b32 v{AEXT+i}, 0")
    for hh in range(2):
        k(f"s_waitcnt vmcnt({10 if hh == 0 else 0})")
        k("s_barrier")
        if stamp and hh == 0: k("s_memtime s[62:63]")
        tags = []
        for s in range(20):
            st = 20*hh + s
            k(f"ds_read_b64_tr_b16 {vr(W0+4*st,2)}, v{V_WA} offset:{s*2048}"); lg.issue()
            k(f"ds_read_b64_tr_b16 {vr(W0+4*st+2,2)}, v{V_WA} offset:{s*2048+512}"); tags.append(lg.issue())
            if s >= 4:
                lg.wait(tags[s-4])
                k(mfma32(ACC1, V_STAT, W0+4*(st-4), "0" if st-4 == 0 else ACC1))
        for s in range(16, 20):
            st = 20*hh + s
            lg.wait(tags[s])
            k(mfma32(ACC1, V_STAT, W0+4*st, ACC1))
        if hh == 0: k(f"v_add_u32 v{V_WA}, 81920, v{V_WA}")
    k("s_barrier")
    if stamp: k("s_memtime s[64:65]")
    ftag = {}
    def rd(s):
        s %= 80
        vb = V_B0 if s < 40 else V_B1
        o = (s % 40) * 1024
        b = BF + 4*(s % NB)
        k(f"ds_read_b64_tr_b16 {vr(b,2)}, v{vb} offset:{o}"); lg.issue()
        k(f"ds_read_b64_tr_b16 {vr(b+2,2)}, v{vb} offset:{o+256}"); ftag[s] = lg.issue()
    lg.done = lg.n
    for s in range(PD): rd(s)
    k("s_nop 4")
    k(f"v_cvt_pk_bf16_f32 v9, v{ACC1}, v{ACC1}")
    k("v_and_b32 v9, 0xffff0000, v9")
    k(f"v_sub_f32 v9, v{ACC1}, v9")
    k("v_cmp_gt_u32 vcc, 32, v2")
    k(f"v_cvt_pk_bf16_f32 v9, v{ACC1}, v9")
    k("s_nop 0")
    k(f"v_cndmask_b32 v{AEXT}, 0, v9, vcc")
    k("s_mov_b32 s37, 0")
    loop = k.lab("loop")
    k(".p2align 4")
    k(f"{loop}:")
    for half in range(2):
        acc = ACC0 if half == 0 else ACC1
        pacc = ACC1 if half == 0 else ACC0
        side = [] if noepi else g1_epilogue(pacc, 36)
        if half == 0:
            side += [f"v_mov_b32 v{V_SA}, v{V_SR}",
                     "s_mov_b32 s36, s38", "s_cmp_eq_u32 s37, 1",
                     f"s_cselect_b32 s35, {29*110592}, s39"]
        else:
            side += [f"v_add_u32 v{V_ST}, 1024, v{V_ST}",
                     f"s_add_u32 s36, s36, {110592}",
                     "s_add_u32 s38, s36, s35", "s_add_u32 s37, s37, 1", "s_cmp_lt_u32 s37, 4"]
        for s in range(40):
            S = 40*half + s
            b = bud[1]
            if S % WG == 0:
                lg.wait(ftag[S+WG-1]); b = bud[0]
            k(mfma32(acc, W0+4*s, BF+4*(S % NB), "0" if s == 0 else acc))
            if S % 20 == 20 - PD:
                k("s_barrier"); b = 0
            rd(S+PD)
            if s == 0:
                k(f"ds_read_b128 {vr(V_STAT,4)}, v{V_ST} offset:{512*half}"); stag = lg.issue()
            if s == extat + 3:
                lg.wait(stag)
                k(mfma32(pacc, AEXT, V_STAT, pacc))
            if s > extat + 5:
                while side and cost(side[0]) <= b:
                    b -= cost(side[0]); emit(k, [side.pop(0)])
        assert not side, len(side)
    k(f"s_cbranch_scc1 {loop}")
    if stamp: k("s_memtime s[66:67]")
    k(f"ds_read_b128 {vr(V_STAT,4)}, v{V_ST}"); stag = lg.issue()
    lg.wait(stag)
    k(mfma32(ACC1, AEXT, V_STAT, ACC1))
    k("s_nop 7")
    k("s_nop 3")
    emit(k, g1_epilogue(ACC1, 36))
    if stamp:
        k("s_waitcnt vmcnt(0)")
        k("s_memtime s[68:69]")
        k("s_waitcnt lgkmcnt(0)")
        k("s_cmp_lg_u32 s2, 8")
        k(f"s_cbranch_scc1 {end}")
        k.srd(12, 8, 256)
        for i in range(4):
            k(f"s_sub_u32 s{62+2*i}, s{62+2*i}, s60")
            k(f"v_mov_b32 v{20+i}, s{62+2*i}")
        k("v_lshlrev_b32 v9, 4, v1")
        k("buffer_store_dwordx4 v[20:23], v9, s[12:15], 0 offen")
    k("s_waitcnt vmcnt(0)")
    k("s_endpgm")
    k(f"{helper}:")
    k("s_and_b32 s29, s30, 3")
    k("v_lshlrev_b32 v10, 4, v2")
    k("v_add_u32 v11, 4096, v10")
    k("s_mul_i32 s34, s29, 5120")
    k(f"s_mul_i32 s33, s31, {4*40960}")
    k("s_add_u32 s33, s33, s34")
    def chunk(c):
        T = (c >> 1) if c < 8 else 28 + (c >> 1)
        go = T*40960 + (c & 1)*20480
        k(f"s_add_u32 m0, s34, {(c % 4)*20480}")
        k(f"s_add_u32 s35, s33, {go}")
        for j in range(4):
            k(f"buffer_load_dwordx4 v10, s[20:23], s35 offen offset:{j*1024} sc1 lds")
        k(f"s_add_u32 m0, s34, {(c % 4)*20480 + 4096}")
        k("s_nop 0")
        k(f"buffer_load_dwordx4 v11, s[20:23], s35 offen sc1 lds")
    k("s_waitcnt vmcnt(10)")
    k("s_barrier")
    k("s_waitcnt vmcnt(0)")
    k("s_barrier")
    for c in range(3): chunk(c)
    k("s_waitcnt vmcnt(10)")
    k("s_barrier")
    k("s_lshl_b32 s38, s31, 11")
    k("s_and_b32 s37, s29, 1")
    k("s_lshl_b32 s37, s37, 10")
    k("s_add_u32 s38, s38, s37")
    k("s_lshr_b32 s37, s29, 1")
    k("s_lshl_b32 s37, s37, 14")
    k("s_add_u32 s38, s38, s37")
    k("s_lshl_b32 s37, s29, 10")
    k(f"s_add_u32 m0, s37, {ST_LDS}")
    k("s_nop 0")
    k("buffer_load_dwordx4 v10, s[24:27], s38 offen sc1 lds")
    for i in range(16):
        n = 6 if i == 0 else (5 if i <= 13 else 0)
        def st(idx):
            if stamp:
                k("s_memtime s[70:71]")
                k("s_waitcnt lgkmcnt(0)")
                k("s_sub_u32 s70, s70, s60")
                k(f"v_writelane_b32 v40, s70, {idx}")
        st(3*i)
        if i < 15: k(f"s_waitcnt vmcnt({n})")
        st(3*i+1)
        k("s_barrier")
        st(3*i+2)
        if i + 3 < 16 and not nodma: chunk(i + 3)
    if stamp:
        k("s_cmp_lg_u32 s2, 8")
        k(f"s_cbranch_scc1 {end}")
        k("s_cmp_lg_u32 s30, 4")
        k(f"s_cbranch_scc1 {end}")
        k.srd(12, 8, 256)
        k("v_lshlrev_b32 v9, 2, v2")
        k("v_add_u32 v9, 64, v9")
        k("buffer_store_dword v40, v9, s[12:15], 0 offen")
        k("s_waitcnt vmcnt(0)")
    k(f"{end}:")
    k("s_endpgm")
    return k
```

```python
from asmlib import *
from naive import wave_sum, rbf, WS_H, XB
from g import *
WS_FL2, WS_EP = 31<<20, (31<<20) + 65536*4
W2T_B = 8*54*5120
FL2_B = 8*8*27*128
FT_S = 27*128

def w2prep_naive():
    k = Kern("w2prep_kernel", 540, 256, 0, vgpr=40)
    end = k.lab("end")
    k("s_cmp_ge_u32 s2, 540")
    k(f"s_cbranch_scc1 {end}")
    k(f"s_load_dwordx2 s[4:5], s[0:1], {KA_W2}")
    k(f"s_load_dwordx2 s[6:7], s[0:1], {KA_WS}")
    k("s_waitcnt lgkmcnt(0)")
    k.srd(8, 4, W_B)
    k.srd(12, 6, W2T_B, WS_W2T)
    k.srd(16, 6, 64, WS_EP)
    k("v_lshrrev_b32 v1, 6, v0")
    k("v_and_b32 v2, 63, v0")
    k("v_readfirstlane_b32 s20, v1")
    k("s_lshl_b32 s21, s2, 2")
    k("s_add_u32 s20, s20, s21")
    k("s_mul_i32 s21, s20, 52429")
    k("s_lshr_b32 s21, s21, 18")
    k("s_mul_i32 s22, s21, 5")
    k("s_sub_u32 s22, s20, s22")
    k("s_mul_i32 s23, s21, 1214")
    k("s_lshr_b32 s23, s23, 16")
    k("s_mul_i32 s24, s23, 54")
    k("s_sub_u32 s24, s21, s24")
    k("s_mul_i32 s25, s23, 160")
    k("s_lshl_b32 s26, s22, 5")
    k("s_add_u32 s25, s25, s26")
    k(f"s_mul_i32 s26, s24, {32*1280}")
    k("s_add_u32 s25, s25, s26")
    k("v_and_b32 v3, 15, v2")
    k("v_lshlrev_b32 v3, 1, v3")
    k("v_lshrrev_b32 v4, 5, v2")
    k(f"v_mul_u32_u24 v4, {16*1280}, v4")
    k("v_add_u32 v3, v3, v4")
    k("v_bfe_u32 v4, v2, 4, 1")
    k(f"v_mul_u32_u24 v4, {4*1280}, v4")
    k("v_add_u32 v3, v3, v4")
    k(f"v_add_u32 v4, {8*1280}, v3")
    for e in range(8):
        va = 3 if e < 4 else 4
        k(f"buffer_load_ushort v{8+e}, v{va}, s[8:11], s25 offen offset:{(e&3)*1280}")
    k("s_waitcnt vmcnt(0)")
    for i in range(4):
        k(f"v_lshl_or_b32 v{20+i}, v{9+2*i}, 16, v{8+2*i}")
    k("s_lshl_b32 s26, s20, 10")
    k("v_lshlrev_b32 v3, 4, v2")
    k("buffer_store_dwordx4 v[20:23], v3, s[12:15], s26 offen")
    k("s_cmp_lg_u32 s20, 0")
    k(f"s_cbranch_scc1 {end}")
    k("v_mov_b32 v3, 0")
    k("buffer_load_dword v4, v3, s[16:19], 0 offen")
    k("s_waitcnt vmcnt(0)")
    k("v_add_u32 v4, 1, v4")
    k("buffer_store_dword v4, v3, s[16:19], 0 offen")
    k(f"{end}:")
    k("s_waitcnt vmcnt(0)")
    k("s_endpgm")
    return k

S_W2T, S_FL, S_OUT, S_TAG, S_RG2, S_DG, S_TQ = 44, 48, 52, 56, 57, 58, 59
S_UH, S_UO, S_B, S_FO, S_CNT = 72, 76, 80, 84, 88
PARK, LATE, RESID, PB0, PB1 = 86016, 0, 20480, 40960, 86016
V_FLV, V_FV = 9, 10

SLP = [0, 0, 0, ' sc1', '']
def poll_check(k, t, vfl, soff):
    if SLP[1]: return
    lp, done = k.lab("pl"), k.lab("pd")
    k(f"s_mov_b32 s{S_CNT}, 0")
    k(f"{lp}:")
    for i in range(4): k(f"v_xor_b32 v{t+i}, s{S_TAG}, v{t+i}")
    k(f"v_or3_b32 v{t}, v{t}, v{t+1}, v{t+2}")
    k(f"v_or_b32 v{t}, v{t}, v{t+3}")
    k(f"v_cmp_ne_u32 vcc, 0, v{t}")
    k(f"s_add_u32 s{S_CNT}, s{S_CNT}, 1")
    k(f"s_cbranch_vccz {done}")
    if SLP[0]: k(f"s_sleep {SLP[0]}")
    k(f"buffer_load_dwordx4 {vr(t,4)}, v{vfl}, s[{S_FL}:{S_FL+3}], s{soff} offen sc1")
    k(f"s_cmp_lt_u32 s{S_CNT}, 20000")
    k("s_waitcnt vmcnt(0)")
    k(f"s_cbranch_scc1 {lp}")
    k(f"{done}:")

def reduce_items(lg, vm, p, R, vra, off, vres, roff, vo, so, T, count=True):
    tags = {}
    iss = []
    def rd(i):
        def f(k):
            k(f"ds_read_b128 {vr(R+4*i,4)}, v{vra} offset:{off+i*5120}"); tags[i] = lg.issue()
        return f
    for i in range(8): iss.append(rd(i))
    def rres(k):
        k(f"ds_read_b64_tr_b16 {vr(T,2)}, v{vres} offset:{roff}"); tags[8] = lg.issue()
    iss.append(rres)
    comp = []
    def w(i): return lambda k: lg.wait(tags[i])
    def add(a, b): return [f"v_add_f32 v{R+4*a+j}, v{R+4*a+j}, v{R+4*b+j}" for j in range(4)]
    comp += [w(1)] + add(0, 1) + [w(3)] + add(2, 3) + [w(5)] + add(4, 5) + add(0, 2) + [w(7)] + add(6, 7) + [w(8)]
    comp += [f"v_lshlrev_b32 v{T+2}, 16, v{T}", f"v_and_b32 v{T+3}, 0xffff0000, v{T}",
             f"v_lshlrev_b32 v{T}, 16, v{T+1}", f"v_and_b32 v{T+1}, 0xffff0000, v{T+1}"]
    comp += add(4, 6)
    comp += [f"v_add_f32 v{R}, v{R}, v{T+2}", f"v_add_f32 v{R+1}, v{R+1}, v{T+3}",
             f"v_add_f32 v{R+2}, v{R+2}, v{T}", f"v_add_f32 v{R+3}, v{R+3}, v{T+1}"]
    comp += add(0, 4)
    comp += [f"v_cvt_pk_bf16_f32 v{T}, v{R}, v{R+1}", f"v_cvt_pk_bf16_f32 v{T+1}, v{R+2}, v{R+3}"]
    def st(k):
        k(f"buffer_store_dwordx2 {vr(T,2)}, v{vo}, s[{S_OUT}:{S_OUT+3}], s{so} offen")
        if count: vm.issue()
    comp.append(st)
    return iss, comp

def emit2(k, items):
    for it in items:
        if callable(it): it(k)
        else: k(it)

def g2_addr_setup(k):
    k(f"s_and_b32 s{S_RG2}, s2, 7")
    k(f"s_bfe_u32 s{S_DG}, s2, 0x30003")
    k(f"s_lshr_b32 s{S_TQ}, s2, 6")
    k(f"s_lshl_b32 s{S_UH}, s{S_RG2}, 3")
    k(f"s_add_u32 s{S_UH}, s{S_UH}, s{S_TQ}")
    k(f"s_mul_i32 s{S_UO}, s{S_UH}, 20480")
    k(f"s_mul_i32 s{S_UH}, s{S_UH}, 55296")
    k(f"s_mul_i32 s{S_UO+1}, s{S_DG}, 160")
    k(f"s_add_u32 s{S_UO}, s{S_UO}, s{S_UO+1}")
    for p, d in ((1, 4), (2, 64), (3, 68)):
        k(f"s_add_u32 s{S_UH+p}, s{S_UH}, {0 if SLP[2] else d*55296}")
        k(f"s_add_u32 s{S_UO+p}, s{S_UO}, {d*20480}")
    k(f"s_lshl_b32 s{S_FO}, s{S_RG2}, 3")
    k(f"s_lshr_b32 s{S_FO+1}, s{S_TQ}, 1")
    k(f"s_add_u32 s{S_FO}, s{S_FO}, s{S_FO+1}")
    k(f"s_mul_i32 s{S_FO}, s{S_FO}, {FT_S}")
    for p in (1, 2, 3): k(f"s_add_u32 s{S_FO+p}, s{S_FO}, {2*FT_S*p}")

def stamp_to(k, v, idx):
    k("s_memtime s[90:91]")
    k("s_waitcnt lgkmcnt(0)")
    k("s_sub_u32 s90, s90, s60")
    k(f"v_writelane_b32 v{v}, s90, {idx}")

def g2_stream(k, vm, lg, NS, A, B, ACC, vl16, vpw, vfl, FT, btag0, ft1, fl, ck, barat, red=None, post=None, st=None, ipg=3):
    btag = {0: btag0}
    ftag = {1: ft1}
    def bload(p, s):
        so = S_B + s // 4
        if 'b' in SLP[4]:
            btag[p][s] = vm.n; return
        k(f"buffer_load_dwordx4 {vr(B+4*s,4)}, v{vl16}, s[40:43], s{so} offen offset:{(s%4)*1024}{SLP[3]}")
        btag[p][s] = vm.issue()
    def setb(p):
        k(f"s_add_u32 s{S_B}, s{S_UH+p}, s{S_B+3}")
        k(f"s_add_u32 s{S_B+1}, s{S_B}, 4096")
        if NS > 8: k(f"s_add_u32 s{S_B+2}, s{S_B}, 8192")
    def pw(p, dt):
        if 'w' in SLP[4]: return lg.n
        k(f"ds_write_b128 v{vpw+(p&1)}, {vr(ACC+4*dt,4)} offset:{dt*1024}"); return lg.issue()
    side = []
    def bar(p):
        emit2(k, side); side.clear()
        lg.wait(wt)
        if st: st(4*p+3)
        k("s_barrier")
        if st: st(4*p+4)
        if red and not ('r' in SLP[4] and p < 3): side.extend(red(p))
    def check(q):
        vm.wait(ftag[q]); poll_check(k, FT, vfl, S_FO+q)
    for p in range(4):
        if p < 3: btag[p+1] = {}
        for s in range(NS):
            vm.wait(btag[p][s])
            if st and s == 0: st(4*p+1)
            if st and s == NS-1: st(4*p+2)
            if post and post[0] == p and post[1] == s: post[2]()
            for dt in range(5):
                k(mfma16(ACC+4*dt, A+20*s+4*dt, B+4*s, "0" if s == 0 else ACC+4*dt))
                if s == 0 and p > 0 and dt < 3: wt = pw(p-1, dt+2)
                if p > 0 and s == barat[p-1] and dt == (4 if s == 0 else 1): bar(p-1)
                if s == NS-1 and dt >= 3: pw(p, dt-3)
                if dt == 0:
                    if s == 0 and p < 3:
                        setb(p+1)
                        if ck[p+1] == -1: check(p+1)
                    for q in (1, 2, 3):
                        if fl.get(q) == (p, s):
                            k(f"buffer_load_dwordx4 {vr(FT,4)}, v{vfl}, s[{S_FL}:{S_FL+3}], s{S_FO+q} offen sc1"); ftag[q] = vm.issue()
                n = 0
                while side and n < ipg:
                    it = side.pop(0); emit2(k, [it]); n += 1
            if p < 3 and s > ck[p+1]: bload(p+1, s)
            if p < 3 and s == ck[p+1]:
                check(p+1)
                for s2 in range(s+1): bload(p+1, s2)
    k("s_nop 5")
    for dt in range(2, 5): wt = pw(3, dt)
    bar(3)
    emit2(k, side)

def g12_kernel(stamp=False, prio=2, NB=8, WG=4, bud=(8, 12), extat=1, nex=14, prio2=2, wfl={2:(0,3), 3:(1,4)}, wck={1:-1, 2:0, 3:2}, wbar=(4,2,0), wpost=(1,0), hfl={2:(0,4), 3:(1,7)}, hck={1:-1, 2:1, 3:4}, hbar=(8,4,0), epfirst=False, hst=True, g2=True, nofw=False, noex=False, noidle=False, slp=0, noflag=False, isl=0, same=False, bsc=' sc1', xp=''):
    PD = NB
    SLP[0] = slp; SLP[1] = noflag; SLP[2] = same; SLP[3] = bsc; SLP[4] = xp
    k = Kern("g12_kernel", 256, 512, 163840, vgpr=256)
    end, helper, idle, g2w, g2h = k.lab("end"), k.lab("helper"), k.lab("idle"), k.lab("g2w"), k.lab("g2h")
    k("s_cmp_ge_u32 s2, 256")
    k(f"s_cbranch_scc1 {end}")
    if stamp: k("s_memtime s[60:61]")
    k(f"s_load_dwordx4 s[4:7], s[0:1], {KA_W1}")
    k(f"s_load_dwordx4 s[8:11], s[0:1], {KA_DBG}")
    k(f"s_load_dwordx2 s[{S_OUT}:{S_OUT+1}], s[0:1], {KA_OUT}")
    k("v_lshrrev_b32 v1, 6, v0")
    k(f"v_and_b32 v{V_LANE}, 63, v0")
    k("v_readfirstlane_b32 s30, v1")
    k("s_lshr_b32 s33, s2, 5")
    k("s_bfe_u32 s32, s2, 0x20001")
    k("s_mul_i32 s32, s32, 7")
    k("s_add_u32 s32, s32, s33")
    k("s_cmp_ge_u32 s33, 7")
    k("s_cselect_b32 s32, 27, s32")
    k("s_and_b32 s31, s2, 1")
    k("s_lshl_b32 s31, s31, 2")
    k("s_bfe_u32 s33, s2, 0x20003")
    k("s_add_u32 s31, s31, s33")
    k("v_lshrrev_b32 v9, 3, v2")
    k("v_mul_u32_u24 v10, 3456, v9")
    k("v_bfe_u32 v9, v2, 1, 2")
    k("v_bfe_u32 v11, v2, 4, 1")
    k("v_xor_b32 v9, v9, v11")
    k("v_lshl_add_u32 v10, v9, 5, v10")
    k("v_and_b32 v9, 1, v2")
    k("v_lshl_add_u32 v10, v9, 4, v10")
    k("v_xor_b32 v11, 64, v10")
    k(f"s_mul_i32 s33, s30, {40*3456}")
    k("s_lshl_b32 s35, s32, 7")
    k("s_add_u32 s33, s33, s35")
    k("s_mul_i32 s34, s30, 5120")
    k("s_waitcnt lgkmcnt(0)")
    k(f"s_add_u32 s36, s10, {WS_EP}")
    k("s_addc_u32 s37, s11, 0")
    k(f"s_load_dword s{S_TAG}, s[36:37], 0")
    k.srd(12, 4, W_B)
    k.srd(16, 6, W_B)
    skipw = k.lab("skipw")
    k("s_cmp_ge_u32 s32, 27")
    k(f"s_cbranch_scc1 {skipw}")
    for hh in range(2):
        for m in range(2):
            for q in range(5):
                k(f"s_add_u32 m0, s34, {hh*81920 + m*40960 + q*1024}")
                k(f"s_add_u32 s35, s33, {(320*hh + 8*q)*3456}")
                k(f"buffer_load_dwordx4 v{10+m}, s[{12+4*m}:{15+4*m}], s35 offen lds")
    k(f"{skipw}:")
    k.srd(20, 10, HT_B, WS_HT)
    k.srd(24, 10, ST2_B, WS_ST2)
    k.srd(40, 10, HM_B, WS_HM)
    k.srd(S_W2T, 10, W2T_B, WS_W2T)
    k.srd(S_FL, 10, FL2_B, WS_FL2)
    k.srd(S_OUT, S_OUT, XB)
    g2_addr_setup(k)
    k("s_cmp_ge_u32 s30, 4")
    k(f"s_cbranch_scc1 {helper}")
    k("s_cmp_ge_u32 s32, 27")
    k(f"s_cbranch_scc1 {idle}")
    k(f"s_setprio {prio}")
    lg = Cnt(k, "lgkmcnt", 15)
    k("v_bfe_u32 v11, v2, 4, 1")
    k("v_and_b32 v14, 31, v2")
    k(f"v_lshlrev_b32 v{V_ST}, 4, v14")
    k(f"v_add_u32 v{V_ST}, {ST_LDS-512}, v{V_ST}")
    k(f"v_mul_u32_u24 v{V_SR}, 55296, v11")
    k("v_lshrrev_b32 v14, 5, v2")
    k(f"v_lshl_add_u32 v{V_SR}, v14, 8, v{V_SR}")
    k("v_and_b32 v14, 15, v2")
    k(f"v_lshl_add_u32 v{V_SR}, v14, 4, v{V_SR}")
    k("s_and_b32 s35, s30, 1")
    k("s_lshl_b32 s35, s35, 9")
    k(f"v_add_u32 v{V_SR}, s35, v{V_SR}")
    k(f"v_mov_b32 v{V_SA}, 0x7ff00000")
    k(f"s_mul_i32 s36, s31, {4*110592}")
    k("s_lshl_b32 s35, s32, 1")
    k("s_lshr_b32 s37, s30, 1")
    k("s_add_u32 s35, s35, s37")
    k("s_lshl_b32 s35, s35, 10")
    k("s_add_u32 s38, s36, s35")
    k("s_mov_b32 s39, 110592")
    k("s_mov_b32 s36, 0")
    k("s_mul_i32 s29, s31, 216")
    k("s_add_u32 s29, s29, s32")
    k("s_lshl_b32 s29, s29, 5")
    k("s_add_u32 s29, s29, s30")
    k("s_lshl_b32 s29, s29, 2")
    k("v_bfe_u32 v9, v2, 2, 2")
    k("v_lshrrev_b32 v10, 5, v2")
    k("v_lshl_add_u32 v10, v10, 3, v9")
    k("v_and_b32 v12, 3, v2")
    k(f"v_lshlrev_b32 v{V_B0}, 6, v10")
    k(f"v_lshl_add_u32 v{V_B0}, v11, 5, v{V_B0}")
    k(f"v_lshl_add_u32 v{V_B0}, v12, 3, v{V_B0}")
    k(f"v_add_u32 v{V_B1}, 40960, v{V_B0}")
    k("v_lshrrev_b32 v13, 1, v12")
    k(f"v_mul_u32_u24 v{V_WA}, 40960, v13")
    k(f"v_lshl_add_u32 v{V_WA}, v10, 7, v{V_WA}")
    k(f"v_lshl_add_u32 v{V_WA}, v11, 4, v{V_WA}")
    k("v_lshrrev_b32 v14, 1, v9")
    k("v_lshl_add_u32 v14, v13, 1, v14")
    k("v_xor_b32 v14, s30, v14")
    k(f"v_lshl_add_u32 v{V_WA}, v14, 5, v{V_WA}")
    k("v_and_b32 v14, 1, v12")
    k(f"v_lshl_add_u32 v{V_WA}, v14, 3, v{V_WA}")
    for i in range(4): k(f"v_mov_b32 v{V_STAT+i}, 0x3f803f80")
    for i in range(4): k(f"v_mov_b32 v{AEXT+i}, 0")
    k("s_waitcnt lgkmcnt(0)")
    for hh in range(2):
        k(f"s_waitcnt vmcnt({10 if hh == 0 else 0})")
        k("s_barrier")
        if stamp and hh == 0: k("s_memtime s[62:63]")
        tags = []
        for s in range(20):
            st = 20*hh + s
            k(f"ds_read_b64_tr_b16 {vr(W0+4*st,2)}, v{V_WA} offset:{s*2048}"); lg.issue()
            k(f"ds_read_b64_tr_b16 {vr(W0+4*st+2,2)}, v{V_WA} offset:{s*2048+512}"); tags.append(lg.issue())
            if s >= 4:
                lg.wait(tags[s-4])
                k(mfma32(ACC1, V_STAT, W0+4*(st-4), "0" if st-4 == 0 else ACC1))
        for s in range(16, 20):
            st = 20*hh + s
            lg.wait(tags[s])
            k(mfma32(ACC1, V_STAT, W0+4*st, ACC1))
        if hh == 0: k(f"v_add_u32 v{V_WA}, 81920, v{V_WA}")
    k("s_barrier")
    if stamp: k("s_memtime s[64:65]")
    ftag = {}
    def rd(s):
        s %= 80
        vb = V_B0 if s < 40 else V_B1
        o = (s % 40) * 1024
        b = BF + 4*(s % NB)
        k(f"ds_read_b64_tr_b16 {vr(b,2)}, v{vb} offset:{o}"); lg.issue()
        k(f"ds_read_b64_tr_b16 {vr(b+2,2)}, v{vb} offset:{o+256}"); ftag[s] = lg.issue()
    lg.done = lg.n
    for s in range(PD): rd(s)
    k("s_nop 4")
    k(f"v_cvt_pk_bf16_f32 v9, v{ACC1}, v{ACC1}")
    k("v_and_b32 v9, 0xffff0000, v9")
    k(f"v_sub_f32 v9, v{ACC1}, v9")
    k("v_cmp_gt_u32 vcc, 32, v2")
    k(f"v_cvt_pk_bf16_f32 v9, v{ACC1}, v9")
    k(f"v_mov_b32 v11, s{S_TAG}")
    k(f"v_cndmask_b32 v{AEXT}, 0, v9, vcc")
    k(f"v_mov_b32 v{V_FLV}, 0x7ff00000")
    k("v_cmp_gt_u32 vcc, 2, v2")
    k(f"v_mul_u32_u24 v12, {FT_S}, v2")
    k(f"v_cndmask_b32 v12, v{V_FLV}, v12, vcc")
    k("v_cmp_eq_u32 vcc, 0, v2")
    k("s_mov_b32 s37, 0")
    k(f"v_cndmask_b32 v{V_FV}, v{V_FLV}, v2, vcc")
    k(f"s_sub_u32 s29, s29, {2*FT_S}")
    loop = k.lab("loop")
    k(".p2align 4")
    k(f"{loop}:")
    for half in range(2):
        acc = ACC0 if half == 0 else ACC1
        pacc = ACC1 if half == 0 else ACC0
        side = g1_epilogue(pacc, 36)
        side[-1:-1] = ["s_nop 0" if nofw else "s_waitcnt vmcnt(0)",
                       f"buffer_store_dword v11, v{V_FLV}, s[{S_FL}:{S_FL+3}], s29 offen offset:{FT_S*half} sc1"]
        if half == 0:
            side += [f"v_mov_b32 v{V_SA}, v{V_SR}",
                     "s_mov_b32 s36, s38", "s_cmp_eq_u32 s37, 1",
                     f"s_cselect_b32 s35, {29*110592}, s39"]
        else:
            side += [f"v_add_u32 v{V_ST}, 1024, v{V_ST}", f"v_mov_b32 v{V_FLV}, v{V_FLV if noflag else V_FV}", f"s_add_u32 s29, s29, {2*FT_S}",
                     f"s_add_u32 s36, s36, {110592}",
                     "s_add_u32 s38, s36, s35", "s_add_u32 s37, s37, 1", "s_cmp_lt_u32 s37, 4"]
        for s in range(40):
            S = 40*half + s
            b = bud[1]
            if S % WG == 0:
                lg.wait(ftag[S+WG-1]); b = bud[0]
            k(mfma32(acc, W0+4*s, BF+4*(S % NB), "0" if s == 0 else acc))
            if S % 20 == 20 - PD:
                k("s_barrier"); b = 0
            rd(S+PD)
            if s == 0:
                k(f"ds_read_b128 {vr(V_STAT,4)}, v{V_ST} offset:{512*half}"); stag = lg.issue()
            if s == extat + 3:
                lg.wait(stag)
                k(mfma32(pacc, AEXT, V_STAT, pacc))
            if s > extat + 4:
                while side and cost(side[0]) <= b:
                    b -= cost(side[0]); emit(k, [side.pop(0)])
        assert not side, len(side)
    k(f"s_cbranch_scc1 {loop}")
    if stamp: k("s_memtime s[66:67]")
    A2, B2, AC2, R2, T2, FT = 96, 196, 216, 28, 236, 240
    VL, VPW, VRA, VRES, VO, VFL, VA = 13, 14, 16, 3, 4, 5, 244
    def w_setup():
        k(f"v_lshlrev_b32 v{VL}, 4, v2")
        k("s_mul_i32 s35, s30, 5")
        k("s_cmp_eq_u32 s30, 3")
        k("s_cselect_b32 s35, 13, s35")
        k(f"s_mul_i32 s33, s35, 5120")
        k(f"s_add_u32 s33, s33, {PARK}")
        k(f"v_add_u32 v{VA}, s33, v{VL}")
        k(f"s_add_u32 s33, s33, 10240")
        k("s_cmp_eq_u32 s30, 3")
        k(f"s_cselect_b32 s33, {LATE}, s33")
        k(f"v_add_u32 v{VA+1}, s33, v{VL}")
        k("s_add_u32 s35, s35, 36")
        k(f"s_lshl_b32 s{S_B+3}, s35, 10")
        k(f"s_add_u32 s{S_B}, s{S_UH}, s{S_B+3}")
        k(f"s_add_u32 s{S_B+1}, s{S_B}, 4096")
    vm = Cnt(k, "vmcnt", 63)
    def w_loads():
        bt = {}
        for s in range(5):
            k(f"buffer_load_dwordx4 {vr(B2+4*s,4)}, v{VL}, s[40:43], s{S_B+s//4} offen offset:{(s%4)*1024}{SLP[3]}"); bt[s] = vm.issue()
        k(f"v_min_u32 v{VFL}, 26, v2")
        k(f"v_lshlrev_b32 v{VFL}, 7, v{VFL}")
        k(f"buffer_load_dwordx4 {vr(FT,4)}, v{VFL}, s[{S_FL}:{S_FL+3}], s{S_FO+1} offen sc1"); bt = (bt, vm.issue())
        rds = []
        for s in range(5):
            for dt in range(5):
                va, o = (VA, s*5120) if s < 2 else (VA+1, (s-2)*5120)
                rds.append(f"ds_read_b128 {vr(A2+20*s+4*dt,4)}, v{va} offset:{o+dt*1024}"); lg.issue()
        return bt, rds
    def w_setup2():
        k("s_mul_i32 s35, s30, 5120")
        k(f"v_add_u32 v{VPW}, s35, v{VL}")
        k(f"v_add_u32 v{VPW+1}, {PB1}, v{VPW}")
        k(f"v_add_u32 v{VPW}, {PB0}, v{VPW}")
        k("s_lshl_b32 s35, s30, 10")
        k(f"v_add_u32 v{VRA}, s35, v{VL}")
        k(f"v_add_u32 v{VRA+1}, {PB1}, v{VRA}")
        k(f"v_add_u32 v{VRA}, {PB0}, v{VRA}")
        k("s_lshl_b32 s35, s30, 9")
        k(f"s_add_u32 s35, s35, {RESID}")
        k(f"v_lshlrev_b32 v{VRES}, 3, v2")
        k(f"v_add_u32 v{VRES}, s35, v{VRES}")
        k(f"v_and_b32 v{VO}, 15, v2")
        k(f"v_mul_u32_u24 v{VO}, 1280, v{VO}")
        k(f"v_lshrrev_b32 v{T2}, 4, v2")
        k(f"v_lshl_add_u32 v{VO}, v{T2}, 3, v{VO}")
        k(f"s_lshl_b32 s35, s30, 5")
        k(f"v_add_u32 v{VO}, s35, v{VO}")
        lg.wait_all()
        z2, z3 = k.lab("z2"), k.lab("z3")
        k("s_cmp_lg_u32 s30, 2")
        k(f"s_cbranch_scc1 {z2}")
        for i in range(20): k(f"v_mov_b32 v{A2+80+i}, 0")
        k(f"{z2}:")
        k("s_cmp_lg_u32 s30, 3")
        k(f"s_cbranch_scc1 {z3}")
        for i in range(20): k(f"v_mov_b32 v{A2+i}, 0")
        k(f"{z3}:")
        k("s_nop 1")
    k(f"ds_read_b128 {vr(V_STAT,4)}, v{V_ST}"); stag = lg.issue()
    w_setup()
    lg.wait(stag)
    k(mfma32(ACC1, AEXT, V_STAT, ACC1))
    vm.n = vm.done = 0
    vm.issue()
    bt, rds = w_loads()
    n0 = 3 if epfirst else 5
    emit(k, rds[:n0]); rds = rds[n0:]
    ep = g1_epilogue(ACC1, 36)
    for i, e in enumerate(ep):
        k(e)
        if i % 2 == 1 and rds and not epfirst: k(rds.pop(0))
    hm7 = vm.issue()
    emit(k, rds)
    if stamp: k("s_memtime s[68:69]")
    k(f"s_setprio {prio2}")
    k(f"{g2w}:")
    w_setup2()
    def post1():
        vm.wait(hm7)
        k(f"buffer_store_dword v11, v12, s[{S_FL}:{S_FL+3}], s29 offen sc1"); vm.issue()
    def red(p):
        iss, comp = reduce_items(lg, vm, p, R2, VRA+(p&1), 0, VRES, p*3072, VO, S_UO+p, T2)
        def t4(k):
            sk = k.lab("t4")
            lg.wait_all()
            k(f"s_cmp_lg_u32 s30, {p}")
            k(f"s_cbranch_scc1 {sk}")
            d = (4-p)
            l2 = Cnt(k, "lgkmcnt", 15)
            k(f"s_add_u32 s35, s{S_UO+p}, {d*32}")
            i2, c2 = reduce_items(l2, vm, p, R2, VRA+(p&1), d*1024, VRES, p*3072 + d*512, VO, 35, T2, count=False)
            emit2(k, i2 + c2)
            k(f"{sk}:")
        return iss + comp + [t4]
    g2_stream(k, vm, lg, 5, A2, B2, AC2, VL, VPW, VFL, FT, bt[0], bt[1], wfl, wck, wbar, red=red, post=(wpost[0], wpost[1], post1))
    if stamp:
        k("s_waitcnt vmcnt(0)")
        k("s_memtime s[70:71]")
        k("s_waitcnt lgkmcnt(0)")
        k("s_cmp_lg_u32 s2, 8")
        k(f"s_cbranch_scc1 {end}")
        k.srd(12, 8, 256)
        for i in range(4):
            k(f"s_sub_u32 s{64+2*i}, s{64+2*i}, s60")
            k(f"v_mov_b32 v{20+i}, s{64+2*i}")
        k("v_lshlrev_b32 v9, 4, v1")
        k("buffer_store_dwordx4 v[20:23], v9, s[12:15], 0 offen")
    k("s_waitcnt vmcnt(0)")
    k("s_endpgm")
    k(f"{idle}:")
    if noidle: k("s_endpgm")
    k(f"v_mov_b32 v12, 0x7ff00000")
    k(f"v_mov_b32 v11, 0")
    k("s_mov_b32 s29, 0")
    w_setup()
    k("s_waitcnt lgkmcnt(0)")
    k("s_barrier")
    sv = (vm.n, vm.done, lg.n, lg.done)
    emit(k, w_loads()[1])
    k(f"buffer_store_dword v11, v12, s[{S_FL}:{S_FL+3}], s29 offen")
    k(f"s_branch {g2w}")
    k(f"{helper}:")
    HA, HB, HC, HFT = 76, 40, 20, 16
    vm = Cnt(k, "vmcnt", 63); lg = Cnt(k, "lgkmcnt", 15)
    k("s_and_b32 s29, s30, 3")
    k("v_lshlrev_b32 v10, 4, v2")
    k("v_add_u32 v11, 4096, v10")
    k("s_mul_i32 s34, s29, 5120")
    k(f"s_mul_i32 s33, s31, {4*40960}")
    k("s_add_u32 s33, s33, s34")
    k(f"s_mul_i32 s39, s{S_DG}, {54*5120}")
    k(f"s_mul_i32 s36, s29, {9*5120}")
    k("s_add_u32 s36, s36, s39")
    k(f"s_mul_i32 s37, s29, {19*1024}")
    k(f"v_min_u32 v12, 26, v2")
    k(f"v_lshlrev_b32 v12, 7, v12")
    k(f"v_lshrrev_b32 v13, 1, v2")
    k(f"v_lshlrev_b32 v13, 6, v13")
    k(f"v_and_b32 v14, 1, v2")
    k(f"v_lshl_add_u32 v13, v14, 4, v13")
    k(f"s_mul_i32 s35, s30, 5120")
    k(f"v_add_u32 v14, s35, v10")
    k(f"v_add_u32 v15, {PB1}, v14")
    k(f"v_add_u32 v14, {PB0}, v14")
    k(f"s_mul_i32 s{S_B+3}, s29, 9216")
    ctag = {}
    def chunk(c):
        T = (c >> 1) if c < 8 else 28 + (c >> 1)
        go = T*40960 + (c & 1)*20480
        k(f"s_add_u32 m0, s34, {(c % 4)*20480}")
        k(f"s_add_u32 s35, s33, {go}")
        for j in range(4):
            k(f"buffer_load_dwordx4 v10, s[20:23], s35 offen offset:{j*1024} sc1 lds"); vm.issue()
        k(f"s_add_u32 m0, s34, {(c % 4)*20480 + 4096}")
        k("s_nop 0")
        k(f"buffer_load_dwordx4 v11, s[20:23], s35 offen sc1 lds"); ctag[c] = vm.issue()
    def ex_a2(g):
        def f():
            k(f"s_add_u32 s35, s36, {g*4096}")
            for u in range(4*g, min(4*g+4, 45)):
                k(f"buffer_load_dwordx4 {vr(HA+4*u,4)}, v10, s[{S_W2T}:{S_W2T+3}], s35 offen offset:{(u%4)*1024} sc1"); vm.issue()
        return f
    def ex_park(g):
        def f():
            k(f"s_add_u32 m0, s37, {PARK + g*4096}")
            k(f"s_add_u32 s35, s37, s39")
            k(f"s_add_u32 s35, s35, {36*5120 + g*4096}")
            for u in range(4*g, min(4*g+4, 19)):
                k(f"buffer_load_dwordx4 v10, s[{S_W2T}:{S_W2T+3}], s35 offen offset:{(u%4)*1024} sc1 lds"); vm.issue()
        return f
    def ex_late():
        k("s_lshl_b32 s35, s29, 12")
        k(f"s_add_u32 m0, s35, {LATE}")
        k(f"s_add_u32 s35, s35, s39")
        k(f"s_add_u32 s35, s35, {51*5120}")
        for u in range(4):
            k(f"buffer_load_dwordx4 v10, s[{S_W2T}:{S_W2T+3}], s35 offen offset:{u*1024} sc1 lds"); t = vm.issue()
        return t
    def ex_resid():
        k(f"s_lshl_b32 s35, s{S_RG2}, 2")
        k(f"s_lshr_b32 s38, s{S_TQ}, 1")
        k("s_add_u32 s35, s35, s38")
        k("s_and_b32 s38, s29, 1")
        k("s_lshl_b32 s38, s38, 1")
        k("s_add_u32 s35, s35, s38")
        k("s_lshr_b32 s38, s29, 1")
        k("s_lshl_b32 s38, s38, 5")
        k("s_add_u32 s35, s35, s38")
        k("s_mul_i32 s35, s35, 40960")
        k(f"s_mul_i32 s38, s{S_DG}, 5120")
        k("s_add_u32 s35, s35, s38")
        k(f"s_and_b32 s38, s{S_TQ}, 1")
        k("s_lshl_b32 s38, s38, 5")
        k("s_add_u32 s35, s35, s38")
        k("s_mul_i32 s38, s29, 3072")
        for j in range(3):
            k(f"s_add_u32 m0, s38, {RESID + j*1024}")
            k("s_nop 0")
            k(f"buffer_load_dwordx4 v13, s[20:23], s35 offen sc1 lds"); t = vm.issue()
            if j < 2: k("s_add_u32 s35, s35, 2048")
        return t
    def ex_flags01():
        k(f"buffer_load_dwordx4 {vr(HC,4)}, v12, s[{S_FL}:{S_FL+3}], s{S_FO} offen sc1"); return vm.issue()
    def h_b0():
        k(f"s_add_u32 s{S_B}, s{S_UH}, s{S_B+3}")
        k(f"s_add_u32 s{S_B+1}, s{S_B}, 4096")
        k(f"s_add_u32 s{S_B+2}, s{S_B}, 8192")
        bt = {}
        for s in range(9):
            k(f"buffer_load_dwordx4 {vr(HB+4*s,4)}, v10, s[40:43], s{S_B+s//4} offen offset:{(s%4)*1024}{SLP[3]}"); bt[s] = vm.issue()
        k(f"buffer_load_dwordx4 {vr(HFT,4)}, v12, s[{S_FL}:{S_FL+3}], s{S_FO+1} offen sc1")
        return bt, vm.issue()
    extras = [ex_park(g) for g in range(5)] + [ex_a2(g) for g in range(12)]
    idleh = k.lab("idleh")
    k("s_waitcnt lgkmcnt(0)")
    k("s_cmp_ge_u32 s32, 27")
    k(f"s_cbranch_scc1 {idleh}")
    k("s_waitcnt vmcnt(10)")
    k("s_barrier")
    k("s_waitcnt vmcnt(0)")
    k("s_barrier")
    for c in range(3): chunk(c)
    vm.wait(ctag[0])
    k("s_barrier")
    k("s_lshl_b32 s38, s31, 11")
    k("s_and_b32 s35, s29, 1")
    k("s_lshl_b32 s35, s35, 10")
    k("s_add_u32 s38, s38, s35")
    k("s_lshr_b32 s35, s29, 1")
    k("s_lshl_b32 s35, s35, 14")
    k("s_add_u32 s38, s38, s35")
    k("s_lshl_b32 s35, s29, 10")
    k(f"s_add_u32 m0, s35, {ST_LDS}")
    k("s_nop 0")
    k("buffer_load_dwordx4 v10, s[24:27], s38 offen sc1 lds"); sttag = vm.issue()
    ex = list(extras)
    for i in range(16):
        if i < 15: vm.wait(ctag[i+1])
        if i == 1: vm.wait(sttag)
        if i == 14:
            vm.wait(f01)
            poll_check(k, HC, 12, S_FO)
        if i == 15: vm.wait(lt)
        if stamp and hst: stamp_to(k, 9, 2*i)
        k("s_barrier")
        if stamp and hst: stamp_to(k, 9, 2*i+1)
        if i + 3 < 16: chunk(i + 3)
        if i < nex and not noex:
            n = (len(extras) * (i+1)) // nex - (len(extras) * i) // nex
            for _ in range(n): ex.pop(0)()
        if i == 12: lt = ex_late(); f01 = ex_flags01()
        if i == 13: ex_resid()
        if i == 14: bt = h_b0()
    n0, d0 = vm.n, vm.done
    k(f"{g2h}:")
    g2_stream(k, vm, lg, 9, HA, HB, HC, 10, 14, 12, HFT, bt[0], bt[1], hfl, hck, hbar, st=(lambda i: stamp_to(k, 9, 31+i)) if stamp and hst else None)
    if stamp:
        k("s_cmp_lg_u32 s2, 8")
        k(f"s_cbranch_scc1 {end}")
        k("s_cmp_lg_u32 s30, 4")
        k(f"s_cbranch_scc1 {end}")
        k.srd(12, 8, 256)
        k("v_lshlrev_b32 v8, 2, v2")
        k("v_add_u32 v8, 64, v8")
        k("buffer_store_dword v9, v8, s[12:15], 0 offen")
        k("s_waitcnt vmcnt(0)")
    k("s_endpgm")
    k(f"{idleh}:")
    if noidle: k("s_endpgm")
    k("s_waitcnt lgkmcnt(0)")
    for e in extras: e()
    ex_late(); ex_resid()
    for _ in range(isl): k("s_sleep 100")
    ex_flags01()
    k("s_waitcnt vmcnt(0)")
    poll_check(k, HC, 12, S_FO)
    k("s_barrier")
    h_b0()
    k(f"s_branch {g2h}")
    k(f"{end}:")
    k("s_endpgm")
    return k
```

```python
from asmlib import *
from naive import rbf, XB
from g import mfma32, WS_HT, HT_B, WS_W2T, W_B, LOG2E
from g12 import WS_EP, W2T_B
WS_UX, WS_F1 = 0, 30<<20
UX_B, F1_B = 256*32768, 256*128
LT, LTS, HTB, HTS, RS = 0, 16896, 50688, 14256, 528
UXZ, UX = 93568, 97152
LNB, LNS = UX, 2624
W2B = UX + 8*LNS
YB, YS = 129920, 8320
CNT = YB + 3*YS
PB = 640*128*2
INV2PI = "0.15915494"
import struct
def f2u(x): return struct.unpack("<I", struct.pack("<f", x))[0]

EARLY = {0: [(0,3)], 4: [(0,2),(0,0)], 1: [(1,3)], 5: [(1,2),(1,0)], 2: [(2,3)], 6: [(2,2)], 3: [(0,1),(1,1)], 7: [(2,1),(2,0)]}
LATE = {0: [(0,7)], 4: [(0,5),(0,4)], 1: [(1,7)], 5: [(1,5),(1,4)], 2: [(2,7)], 6: [(2,6),(2,4)], 3: [(0,6),(2,5)], 7: [(1,6)]}
EARLY2 = {0: [(0,3)], 4: [(0,0)], 1: [(1,3)], 5: [(1,0)], 2: [(0,2)], 6: [(0,1)], 3: [(1,2)], 7: [(1,1)]}
LATE2 = {0: [(0,7)], 4: [(0,4)], 1: [(1,7)], 5: [(1,4)], 2: [(0,6)], 6: [(0,5)], 3: [(1,6)], 7: [(1,5)]}
def jobword(jobs):
    w = 0
    for i, (ch, c) in enumerate(jobs): w |= (ch*8 + c) << (5*i)
    w |= 31 << (5*len(jobs))
    assert w < (1 << 32)
    return w

def cmul(d, a, b, t):
    return [f"v_pk_mul_f32 {vr(t,2)}, {vr(a,2)}, {vr(b,2)} op_sel:[0,0] op_sel_hi:[1,0]",
            f"v_pk_fma_f32 {vr(d,2)}, {vr(a,2)}, {vr(b,2)}, {vr(t,2)} op_sel:[1,1,0] op_sel_hi:[0,1,1] neg_lo:[1,0,0]"]
def cexp(d, ea, th, s, t):
    return [f"v_mul_f32 v{t}, {s}, v{ea}", f"v_mul_f32 v{t+1}, {s}, v{th}",
            f"v_exp_f32 v{t}, v{t}", f"v_fract_f32 v{t+1}, v{t+1}",
            f"v_cos_f32 v{d}, v{t+1}", f"v_sin_f32 v{d+1}, v{t+1}", None,
            f"v_pk_mul_f32 {vr(d,2)}, {vr(d,2)}, {vr(t,2)} op_sel:[0,0] op_sel_hi:[1,0]"]
def ilv(k, lists):
    n = max(len(l) for l in lists)
    for i in range(n):
        for l in lists:
            if i < len(l) and l[i] is not None: k(l[i])

S_X, S_D, S_LAR, S_AIM, S_CRE, S_CIM, S_LDT, S_W2, S_UX, S_F1, S_W2T, S_HT = 12, 16, 20, 24, 28, 32, 36, 40, 44, 48, 52, 56
S_W, S_TAG, S_CH0 = 64, 65, 66
S_M63 = 68

def ka_kernel(stamp=False, flagat=(10, 8, 8), pollat=(12, 13), slp=8, name="ka_kernel", cx=""):
    k = Kern(name, 256, 512, 163840, vgpr=80)
    end = k.lab("end")
    stamps = []
    def st(idx):
        if stamp:
            k("s_memtime s[90:91]")
            k("s_waitcnt lgkmcnt(0)")
            k("s_sub_u32 s90, s90, s60")
            k(f"v_writelane_b32 v79, s90, {idx}")
    k("s_cmp_ge_u32 s2, 256")
    k(f"s_cbranch_scc1 {end}")
    if stamp: k("s_memtime s[60:61]")
    k(f"s_load_dwordx8 s[4:11], s[0:1], 0")
    k(f"s_load_dwordx4 s[72:75], s[0:1], {KA_CIM}")
    k(f"s_load_dwordx2 s[76:77], s[0:1], {KA_DSK}")
    k(f"s_load_dwordx2 s[78:79], s[0:1], {KA_W2}")
    k(f"s_load_dwordx4 s[80:83], s[0:1], {KA_DBG}")
    k("v_lshrrev_b32 v1, 6, v0")
    k("v_and_b32 v2, 63, v0")
    k(f"v_readfirstlane_b32 s{S_W}, v1")
    k("v_lshlrev_b32 v3, 4, v2")
    k("v_lshlrev_b32 v9, 2, v2")
    for i in range(56, 71): k(f"v_mov_b32 v{i}, 0")
    k("s_lshr_b32 s3, s2, 2")
    k("s_lshl_b32 s3, s3, 5")
    k("s_and_b32 s84, s2, 3")
    k("s_add_u32 s3, s3, s84")
    k(f"s_lshl_b32 s84, s{S_W}, 2")
    k("s_add_u32 s3, s3, s84")
    k("s_mul_i32 s3, s3, 1280")
    k("s_lshr_b32 s84, s2, 1")
    k("s_mul_i32 s84, s84, 5")
    k("s_and_b32 s85, s2, 1")
    k("s_mul_i32 s85, s85, 3")
    k(f"s_add_u32 s{S_CH0}, s84, s85")
    k(f"s_lshl_b32 s84, s{S_CH0}, 8")
    k(f"s_and_b32 s85, s{S_W}, 1")
    k("s_lshl_b32 s85, s85, 7")
    k("s_add_u32 s84, s84, s85")
    k("v_lshlrev_b32 v15, 1, v2")
    k(f"s_lshl_b32 s85, s{S_CH0}, 1")
    k("v_mov_b32 v55, 0")
    k("s_waitcnt lgkmcnt(0)")
    k.srd(S_X, 4, XB)
    k(f"buffer_load_dwordx4 v[4:7], v3, s[{S_X}:{S_X+3}], s3 offen")
    k(f"buffer_load_dword v8, v9, s[{S_X}:{S_X+3}], s3 offen offset:1024")
    k.srd(S_D, 76, 1280)
    k(f"buffer_load_dwordx4 v[10:13], v3, s[{S_D}:{S_D+3}], 0 offen")
    k(f"buffer_load_dword v14, v9, s[{S_D}:{S_D+3}], 0 offen offset:1024")
    k(f"s_add_u32 s86, s82, {WS_EP}")
    k("s_addc_u32 s87, s83, 0")
    k(f"s_load_dword s{S_TAG}, s[86:87], 0")
    k.srd(S_W2, 78, W_B)
    now2 = k.lab("now2")
    k("s_cmp_ge_u32 s2, 216")
    k(f"s_cbranch_scc1 {now2}")
    k("v_mul_u32_u24 v16, 13, v2")
    k("v_lshrrev_b32 v16, 8, v16")
    k("v_mul_u32_u24 v17, 20, v16")
    k("v_sub_u32 v17, v2, v17")
    k("v_mul_u32_u24 v16, 1280, v16")
    k("v_lshl_add_u32 v16, v17, 4, v16")
    k(f"v_add_u32 v17, {3*1280+64}, v3")
    k("s_lshr_b32 s86, s2, 2")
    k(f"s_mul_i32 s86, s86, {32*1280}")
    k("s_and_b32 s87, s2, 3")
    k("s_mul_i32 s87, s87, 320")
    k("s_add_u32 s86, s86, s87")
    k(f"s_mul_i32 s87, s{S_W}, {4*1280}")
    k("s_add_u32 s86, s86, s87")
    k(f"s_mul_i32 s87, s{S_W}, 1280")
    k(f"s_add_u32 m0, s87, {W2B}")
    k("s_nop 0")
    k(f"buffer_load_dwordx4 v16, s[{S_W2}:{S_W2+3}], s86 offen lds")
    k(f"s_add_u32 m0, s87, {W2B+1024}")
    k("s_mov_b64 exec, 0xffff")
    k(f"buffer_load_dwordx4 v17, s[{S_W2}:{S_W2+3}], s86 offen lds")
    k("s_mov_b64 exec, -1")
    k(f"{now2}:")
    k.srd(S_LAR, 6, PB); k.srd(S_AIM, 8, PB); k.srd(S_CRE, 10, PB); k.srd(S_CIM, 72, PB); k.srd(S_LDT, 74, 1280)
    P_LAR, P_AIM, P_LDT, P_CRE, P_CIM = 56, 59, 62, 65, 68
    for c in range(3):
        k(f"buffer_load_short_d16_hi v{P_LAR+c}, v15, s[{S_LAR}:{S_LAR+3}], s84 offen offset:{256*c}")
        k(f"buffer_load_short_d16_hi v{P_AIM+c}, v15, s[{S_AIM}:{S_AIM+3}], s84 offen offset:{256*c}")
        k(f"buffer_load_short_d16_hi v{P_LDT+c}, v55, s[{S_LDT}:{S_LDT+3}], s85 offen offset:{2*c}")
    for c in range(3):
        k(f"buffer_load_short_d16_hi v{P_CRE+c}, v15, s[{S_CRE}:{S_CRE+3}], s84 offen offset:{256*c}")
        k(f"buffer_load_short_d16_hi v{P_CIM+c}, v15, s[{S_CIM}:{S_CIM+3}], s84 offen offset:{256*c}")
    k.srd(S_UX, 82, UX_B, WS_UX)
    k.srd(S_F1, 82, F1_B, WS_F1)
    k.srd(S_W2T, 82, W2T_B, WS_W2T)
    k.srd(S_HT, 82, HT_B, WS_HT)
    k(f"s_mov_b32 s{S_M63}, 0")
    k(f"s_mov_b32 s{S_M63+1}, 0x80000000")
    for i in range(4): k(f"v_mov_b32 v{16+i}, 0")
    k("v_lshlrev_b32 v20, 4, v0")
    k(f"v_add_u32 v21, {YB}, v20")
    for i in range(3): k(f"ds_write_b128 v21, v[16:19] offset:{8192*i}")
    k("v_cmp_gt_u32 vcc, 224, v0")
    k(f"v_add_u32 v22, {YB+24576-UXZ}, v20")
    k(f"v_subrev_u32 v22, 3584, v22")
    k("v_cndmask_b32 v22, v22, v20, vcc")
    k(f"v_add_u32 v22, {UXZ}, v22")
    k("v_cmp_gt_u32 vcc, 256, v0")
    k("s_nop 1")
    k("s_and_saveexec_b64 s[86:87], vcc")
    k("ds_write_b128 v22, v[16:19]")
    k("s_mov_b64 exec, s[86:87]")
    for R in range(3):
        k("v_lshrrev_b32 v20, 1, v0")
        if R: k(f"v_add_u32 v20, {256*R}, v20")
        k("v_mul_u32_u24 v21, 52429, v20")
        k("v_lshrrev_b32 v21, 18, v21")
        k("v_mul_u32_u24 v22, 5, v21")
        k("v_sub_u32 v22, v20, v22")
        k(f"v_lshlrev_b32 v{72+R}, 16, v21")
        k(f"v_lshl_add_u32 v{72+R}, v22, 5, v{72+R}")
        k("v_cmp_lt_u32 vcc, 2, v22")
        k("v_and_b32 v20, 1, v0")
        k(f"v_lshl_add_u32 v{72+R}, v20, 4, v{72+R}")
        k(f"v_add_u32 v20, {32768-96}, v{72+R}")
        k(f"v_cndmask_b32 v{72+R}, v{72+R}, v20, vcc")
    k(f"s_mul_i32 s86, s{S_W}, {LNS}")
    k(f"s_add_u32 s86, s86, {LNB}")
    k("v_lshlrev_b32 v71, 5, v2")
    k("v_add_u32 v71, s86, v71")
    k("v_lshlrev_b32 v54, 3, v2")
    k("v_add_u32 v54, s86, v54")
    k("v_bfe_u32 v20, v2, 2, 2")
    k(f"v_mul_u32_u24 v75, {LNS}, v20")
    k("v_and_b32 v21, 3, v2")
    k("v_lshl_add_u32 v75, v21, 3, v75")
    k("v_lshrrev_b32 v22, 4, v0")
    k("v_lshl_add_u32 v75, v22, 5, v75")
    k(f"v_add_u32 v75, {LNB}, v75")
    k("v_lshrrev_b32 v22, 5, v2")
    k("v_lshl_add_u32 v20, v22, 4, v20")
    k("v_bfe_u32 v22, v2, 4, 1")
    k("v_lshl_add_u32 v20, v22, 2, v20")
    k("v_mul_u32_u24 v53, 320, v20")
    k("v_lshl_add_u32 v53, v21, 3, v53")
    k(f"s_lshl_b32 s86, s{S_W}, 5")
    k(f"s_add_u32 s86, s86, {W2B}")
    k("v_add_u32 v53, s86, v53")
    k("s_cmp_ge_u32 s2, 216")
    k("s_waitcnt vmcnt(17)")
    w15 = k.lab("w15")
    k(f"s_cbranch_scc0 {w15}")
    k("s_waitcnt vmcnt(15)")
    k(f"{w15}:")
    st(0)
    X, DD = 16, 26
    for i in range(5):
        k(f"v_lshlrev_b32 v{X+2*i}, 16, v{4+i}")
        k(f"v_and_b32 v{X+2*i+1}, 0xffff0000, v{4+i}")
    k(f"v_pk_add_f32 v[36:37], {vr(X,2)}, {vr(X+2,2)}")
    k(f"v_pk_mul_f32 v[38:39], {vr(X,2)}, {vr(X,2)}")
    k(f"v_pk_add_f32 v[40:41], {vr(X+4,2)}, {vr(X+6,2)}")
    k(f"v_pk_fma_f32 v[38:39], {vr(X+2,2)}, {vr(X+2,2)}, v[38:39]")
    k(f"v_pk_add_f32 v[36:37], v[36:37], {vr(X+8,2)}")
    k(f"v_pk_fma_f32 v[38:39], {vr(X+4,2)}, {vr(X+4,2)}, v[38:39]")
    k(f"v_pk_add_f32 v[36:37], v[36:37], v[40:41]")
    k(f"v_pk_fma_f32 v[38:39], {vr(X+6,2)}, {vr(X+6,2)}, v[38:39]")
    k(f"v_pk_fma_f32 v[38:39], {vr(X+8,2)}, {vr(X+8,2)}, v[38:39]")
    k("v_add_f32 v36, v36, v37")
    k("v_add_f32 v38, v38, v39")
    fill = []
    for i in range(5):
        fill += [f"v_lshlrev_b32 v{DD+2*i}, 16, v{10+i}", f"v_and_b32 v{DD+2*i+1}, 0xffff0000, v{10+i}"]
    dp = [f"row_shr:{sh} row_mask:0xf bank_mask:0xf bound_ctrl:0" for sh in (1, 2, 4, 8)] + \
         ["row_bcast:15 row_mask:0xa bank_mask:0xf", "row_bcast:31 row_mask:0xc bank_mask:0xf"]
    k(fill.pop(0))
    for d in dp:
        k(fill.pop(0) if fill else "s_nop 0")
        k(f"v_add_f32_dpp v36, v36, v36 {d}")
        k(f"v_add_f32_dpp v38, v38, v38 {d}")
    for f in fill: k(f)
    k("s_nop 0")
    k("v_readlane_b32 s86, v36, 63")
    k("v_readlane_b32 s87, v38, 63")
    k(f"v_mov_b32 v40, {f2u(1/640)}")
    k("s_nop 2")
    k("v_mul_f32 v36, s86, v40")
    k("v_mul_f32 v38, s87, v40")
    k("v_fma_f32 v38, -v36, v36, v38")
    k("v_max_f32 v38, 0, v38")
    rbf(k, 38)
    k("v_add_f32 v38, 0x3727c5ac, v38")
    rbf(k, 38)
    k("v_sqrt_f32 v38, v38")
    rbf(k, 36)
    rbf(k, 38)
    k("v_rcp_f32 v40, v38")
    k("s_nop 0")
    k("v_mul_f32 v41, -v36, v40")
    U = 42
    for i in range(5):
        k(f"v_pk_fma_f32 {vr(U+2*i,2)}, {vr(X+2*i,2)}, v[40:41], v[40:41] op_sel:[0,0,1] op_sel_hi:[1,0,1]")
    for i in range(5):
        k(f"v_pk_fma_f32 {vr(X+2*i,2)}, {vr(U+2*i,2)}, {vr(DD+2*i,2)}, {vr(X+2*i,2)}")
    for i in range(10):
        k(f"v_cvt_pk_bf16_f32 v{28+i}, v{U+i}, v{X+i}")
        if i == 3: k("ds_write_b128 v71, v[28:31]")
        if i == 7: k("ds_write_b128 v71, v[32:35] offset:16")
    k("ds_write_b64 v54, v[36:37] offset:2048")
    k("s_waitcnt vmcnt(0) lgkmcnt(0)")
    k("s_barrier")
    st(1)
    for R in range(2):
        k(f"ds_read_b64_tr_b16 {vr(16+4*R,2)}, v75 offset:{1024*R}")
        k(f"ds_read_b64_tr_b16 {vr(18+4*R,2)}, v75 offset:{1024*R+4*LNS}")
    k(f"ds_read_b64_tr_b16 v[28:29], v53")
    k(f"ds_read_b64_tr_b16 v[30:31], v53 offset:{8*320}")
    k("s_lshl_b32 s86, s2, 7")
    r2, nw = k.lab("r2"), k.lab("nw")
    k(f"s_cmp_ge_u32 s{S_W}, 4")
    k(f"s_cbranch_scc1 {r2}")
    k(f"ds_read_b64_tr_b16 v[24:25], v75 offset:2048")
    k(f"ds_read_b64_tr_b16 v[26:27], v75 offset:{2048+4*LNS}")
    k(f"ds_read_b64_tr_b16 v[32:33], v53 offset:256")
    k(f"ds_read_b64_tr_b16 v[34:35], v53 offset:{8*320+256}")
    k("s_waitcnt lgkmcnt(2)")
    k(f"buffer_store_dwordx4 v[24:27], v74, s[{S_UX}:{S_UX+3}], s86 offen sc1")
    k(f"{r2}:")
    k("s_waitcnt lgkmcnt(0)")
    k(f"buffer_store_dwordx4 v[16:19], v72, s[{S_UX}:{S_UX+3}], s86 offen sc1")
    k(f"buffer_store_dwordx4 v[20:23], v73, s[{S_UX}:{S_UX+3}], s86 offen sc1")
    k("s_cmp_ge_u32 s2, 216")
    k(f"s_cbranch_scc1 {nw}")
    k("s_and_b32 s86, s2, 3")
    k(f"s_mul_i32 s86, s86, {2*54*5*1024}")
    k("s_lshr_b32 s87, s2, 2")
    k("s_mul_i32 s87, s87, 5120")
    k("s_add_u32 s86, s86, s87")
    k(f"s_lshl_b32 s87, s{S_W}, 10")
    k("s_add_u32 s86, s86, s87")
    k(f"s_add_u32 s87, s86, {54*5120-5120}")
    k(f"s_cmp_ge_u32 s{S_W}, 5")
    k("s_cselect_b32 s88, s87, s86")
    k(f"buffer_store_dwordx4 v[28:31], v3, s[{S_W2T}:{S_W2T+3}], s88 offen sc1")
    k(f"s_cmp_ge_u32 s{S_W}, 2")
    k(f"s_cbranch_scc1 {nw}")
    k(f"s_add_u32 s87, s87, 8192")
    k(f"buffer_store_dwordx4 v[32:35], v3, s[{S_W2T}:{S_W2T+3}], s87 offen sc1")
    k(f"{nw}:")
    k("s_barrier")
    st(2)
    EA = [4, 5, 6]; TH = [7, 8, 9]
    PA = [16, 18, 20]; PBs = [22, 24, 26]; PC = [28, 30, 32]; PD = [34, 36, 38]; PT = [40, 42, 44]; PE = [46, 48, 50]; PK = [10, 11, 12]
    k(f"s_mov_b32 s84, {LOG2E}")
    base = []
    for c in range(3):
        dt = P_LDT + c
        base.append([f"v_mul_f32 v{EA[c]}, s84, v{P_LAR+c}", f"v_mul_f32 v{dt}, s84, v{dt}",
                     f"v_exp_f32 v{EA[c]}, v{EA[c]}", f"v_exp_f32 v{dt}, v{dt}", None,
                     f"v_cvt_pk_bf16_f32 v{EA[c]}, v{EA[c]}, v{EA[c]}", f"v_cvt_pk_bf16_f32 v{dt}, v{dt}, v{dt}",
                     f"v_and_b32 v{EA[c]}, 0xffff0000, v{EA[c]}", f"v_and_b32 v{dt}, 0xffff0000, v{dt}",
                     f"v_mul_f32 v{EA[c]}, v{EA[c]}, v{dt}", f"v_mul_f32 v{TH[c]}, v{P_AIM+c}, v{dt}",
                     f"v_mul_f32 v{EA[c]}, {LOG2E | 0x80000000}, v{EA[c]}", f"v_mul_f32 v{TH[c]}, {INV2PI}, v{TH[c]}"])
    ilv(k, base)
    def flag_step():
        sk = k.lab("nf")
        k("s_waitcnt vmcnt(0)")
        k(f"v_mov_b32 v13, {CNT}")
        k("v_mov_b32 v14, 1")
        k("s_mov_b64 exec, 1")
        k("ds_add_rtn_u32 v14, v13, v14")
        k("s_waitcnt lgkmcnt(0)")
        k("v_readfirstlane_b32 s86, v14")
        k(f"s_add_u32 s87, s{S_TAG}, 1")
        k("v_mov_b32 v14, s87")
        k("v_mov_b32 v13, 0")
        k("s_lshl_b32 s87, s2, 7")
        k("s_cmp_lg_u32 s86, 7")
        k(f"s_cbranch_scc1 {sk}")
        k(f"buffer_store_dword v14, v13, s[{S_F1}:{S_F1+3}], s87 offen sc1")
        k(f"{sk}:")
        k("s_mov_b64 exec, -1")
    def wr(c, pair, off, neg):
        return [f"v_cvt_pk_bf16_f32 v{PK[c]}, v{pair}, {'-' if neg else ''}v{pair+1}",
                f"ds_write_addtid_b32 v{PK[c]} offset:{off}"]
    hpath, hb, tdone = k.lab("hp"), k.lab("hb"), k.lab("td")
    k(f"s_and_b32 s85, s{S_W}, 1")
    k("s_lshl_b32 s85, s85, 8")
    k(f"s_cmp_ge_u32 s{S_W}, 4")
    k(f"s_cbranch_scc1 {hpath}")
    k(f"s_bfe_u32 s86, s{S_W}, 0x10001")
    k(f"s_mul_i32 s87, s86, {16*RS}")
    k("s_add_u32 m0, s85, s87")
    k(f"s_mul_i32 s86, s86, {f2u(128.0)}")
    ilv(k, [cexp(PBs[c], EA[c], TH[c], "0x41000000", PT[c]) for c in range(3)])
    ilv(k, [cexp(PA[c], EA[c], TH[c], "s86", PT[c]) for c in range(3)])
    for e in range(16):
        if e == flagat[0]: flag_step()
        ilv(k, [wr(c, PA[c], LT + c*LTS + e*RS, False) + (cmul(PA[c], PA[c], PBs[c], PT[c]) if e < 15 else []) for c in range(3)])
    k(f"s_branch {tdone}")
    k(f"{hpath}:")
    k(f"s_add_u32 m0, s85, {HTB}")
    ilv(k, [[f"v_add_f32 v{P_LDT+c}, v{P_LDT+c}, v{P_LDT+c}", f"v_mul_f32 v{PC[c]}, v{P_CRE+c}, v{P_LDT+c}", f"v_mul_f32 v{PC[c]+1}, v{P_CIM+c}, v{P_LDT+c}"] for c in range(3)])
    k(f"s_and_b32 s88, s{S_W}, 3")
    k("s_lshl_b32 s88, s88, 13")
    k("v_lshlrev_b32 v54, 7, v2")
    def poll_issue():
        k(f"buffer_load_dword v55, v54, s[{S_F1}:{S_F1+3}], s88 offen sc1")
    k(f"s_cmp_ge_u32 s{S_W}, 6")
    k(f"s_cbranch_scc1 {hb}")
    ilv(k, [cexp(PBs[c], EA[c], TH[c], "1.0", PT[c]) for c in range(3)])
    ilv(k, [cexp(PD[c], EA[c], TH[c], "0x43800000", PT[c]) for c in range(3)])
    ilv(k, [cmul(PD[c], PD[c], PC[c], PT[c]) for c in range(3)])
    for e in range(13):
        if e == flagat[1]: flag_step()
        if e == pollat[0]: poll_issue()
        if e < 8:
            ilv(k, [wr(c, PC[c], c*HTS + e*RS, True) + (cmul(PC[c], PC[c], PBs[c], PT[c]) if e < 7 else cmul(PBs[c], PBs[c], PBs[c], PT[c])) for c in range(3)])
        else:
            ilv(k, [wr(c, PD[c], c*HTS + e*RS, True) + (cmul(PD[c], PD[c], PBs[c], PT[c]) if e < 12 else []) for c in range(3)])
    k(f"s_branch {tdone}")
    k(f"{hb}:")
    ilv(k, [cexp(PBs[c], EA[c], TH[c], "4.0", PT[c]) for c in range(3)])
    ilv(k, [cexp(PD[c], EA[c], TH[c], "0x43800000", PT[c]) for c in range(3)])
    ilv(k, [cexp(PA[c], EA[c], TH[c], "0x44000000", PT[c]) for c in range(3)])
    ilv(k, [cmul(PA[c], PA[c], PC[c], PT[c]) + cmul(PE[c], PBs[c], PBs[c], PT[c]) for c in range(3)])
    row = 13
    e = 0
    for blk in range(6):
        mults = [PBs, PE] if blk < 2 else [PE]
        if e <= flagat[2] < e + 1 + len(mults): flag_step()
        if e <= pollat[1] < e + 1 + len(mults): poll_issue()
        e += 1 + len(mults)
        ilv(k, [wr(c, PA[c], c*HTS + row*RS, True) for c in range(3)]); row += 1
        for m in mults:
            ilv(k, [cmul(PC[c], PA[c], m[c], PT[c]) + wr(c, PC[c], c*HTS + row*RS, True) for c in range(3)]); row += 1
        if blk < 5: ilv(k, [cmul(PA[c], PA[c], PD[c], PT[c]) for c in range(3)])
    assert row == 27
    k(f"{tdone}:")
    k("s_waitcnt lgkmcnt(0)")
    st(3)
    k("s_barrier")
    st(4)
    gat, kdone = k.lab("gat"), k.lab("kd")
    k(f"s_cmp_ge_u32 s{S_W}, 4")
    k(f"s_cbranch_scc1 {gat}")
    k(f"s_cmp_ge_u32 s{S_W}, 3")
    k(f"s_cbranch_scc1 {kdone}")
    lg = Cnt(k, "lgkmcnt", 15)
    k("v_and_b32 v4, 31, v2")
    k("v_lshrrev_b32 v5, 5, v2")
    k("v_lshrrev_b32 v6, 3, v4")
    k("v_bfe_u32 v7, v4, 2, 1")
    k("v_and_b32 v8, 3, v4")
    k("v_min_u32 v9, 2, v8")
    k("v_lshl_add_u32 v9, v7, 1, v9")
    k("v_add_u32 v9, 8, v9")
    k("v_lshrrev_b32 v10, 1, v8")
    k("v_add3_u32 v10, v10, v8, v7")
    k("v_add_u32 v10, 13, v10")
    k("v_lshl_add_u32 v11, v8, 1, v7")
    k("v_add_u32 v11, 19, v11")
    k("v_cmp_eq_u32 vcc, 1, v6")
    k("v_cmp_eq_u32 s[86:87], 2, v6")
    k("v_cmp_eq_u32 s[88:89], 3, v6")
    k(f"s_mul_i32 s85, s{S_W}, {HTS}")
    k("v_cndmask_b32 v9, v4, v9, vcc")
    k("v_cndmask_b32 v9, v9, v10, s[86:87]")
    k("v_cndmask_b32 v9, v9, v11, s[88:89]")
    k(f"s_add_u32 s85, s85, {HTB}")
    k(f"v_mul_u32_u24 v9, {RS}, v9")
    k("v_lshl_add_u32 v9, v5, 4, v9")
    k("v_add_u32 v9, s85, v9")
    k(f"s_mul_i32 s85, s{S_W}, {LTS}")
    k(f"v_mul_u32_u24 v10, {RS}, v4")
    k("v_lshl_add_u32 v10, v5, 4, v10")
    k("v_add_u32 v10, s85, v10")
    KA_, NBK = 32, 5
    tg = {}
    def krd(s):
        b = KA_ + 8*(s % NBK)
        k(f"ds_read_b128 {vr(b,4)}, v9 offset:{32*s}"); lg.issue()
        k(f"ds_read_b128 {vr(b+4,4)}, v10 offset:{32*s}"); tg[s] = lg.issue()
    for s in range(NBK): krd(s)
    k("v_lshlrev_b32 v11, 4, v4")
    k("v_lshl_add_u32 v11, v5, 3, v11")
    k("v_add_u32 v11, s85, v11")
    k("v_cmp_eq_u32 s[86:87], 1, v5")
    k("v_mov_b32 v12, 0")
    k("v_mov_b32 v13, 0")
    for s in range(16):
        lg.wait(tg[s])
        b = KA_ + 8*(s % NBK)
        k(mfma32(16, b, b+4, "0" if s == 0 else 16))
        if s + NBK < 16: krd(s + NBK)
    k("s_nop 7")
    k("s_nop 4")
    D = 16
    k(f"v_cvt_pk_bf16_f32 v32, v{D}, v{D+1}")
    k(f"v_cvt_pk_bf16_f32 v33, v{D+2}, v{D+3}")
    k(f"v_cvt_pk_bf16_f32 v34, v{D+4}, v{D+4}")
    k(f"v_cvt_pk_bf16_f32 v35, v{D+5}, v{D+6}")
    k("ds_write_b64 v11, v[32:33] offset:64")
    k(f"v_cndmask_b32 v6, v{D+8}, v{D+9}, s[86:87]")
    k(f"v_cndmask_b32 v7, v{D+10}, v{D+11}, s[86:87]")
    k("ds_write_b64 v11, v[34:35] offset:576")
    k(f"v_cvt_pk_bf16_f32 v36, v{D+8}, v{D+8}")
    k(f"v_cvt_pk_bf16_f32 v37, v6, v{D+9}")
    k(f"v_cvt_pk_bf16_f32 v38, v{D+10}, v{D+10}")
    k(f"v_cvt_pk_bf16_f32 v39, v7, v{D+11}")
    k("ds_write_b64 v11, v[36:37] offset:1088")
    k("ds_write_b64 v11, v[38:39] offset:1600")
    for a in range(4):
        k(f"v_cvt_pk_bf16_f32 v{40+2*a}, v{D+12+a}, v{D+12+a}")
        k(f"v_cvt_pk_bf16_f32 v{41+2*a}, v{D+12+a}, v{D+12+a}")
        k(f"ds_write_b64 v11, {vr(40+2*a,2)} offset:{64+2048+512*a}")
    k("s_mov_b64 exec, 0x55555555")
    for a in range(4):
        k(f"ds_write_b16 v11, v{40+2*a} offset:{64+2048+512*a+8}")
    k("s_mov_b32 exec_lo, 15")
    k("s_mov_b32 exec_hi, 15")
    k("ds_write_b64 v11, v[12:13]")
    k("s_mov_b64 exec, -1")
    k(f"s_branch {kdone}")
    k(f"{gat}:")
    lp, dn = k.lab("pl"), k.lab("pd")
    k("v_lshrrev_b32 v4, 4, v2")
    k("v_and_b32 v5, 7, v2")
    k("v_xor_b32 v4, v4, v5")
    k("v_lshrrev_b32 v5, 3, v2")
    k("v_lshlrev_b32 v5, 7, v5")
    k("v_lshl_add_u32 v4, v4, 4, v5")
    k("v_xor_b32 v5, 64, v4")
    k("s_lshl_b32 s86, s2, 15")
    k("s_add_u32 s86, s86, s88")
    k(f"s_add_u32 s87, s{S_TAG}, 1")
    k("s_mov_b32 s85, 0")
    k(f"{lp}:")
    k("s_waitcnt vmcnt(0)")
    k("v_cmp_ne_u32 vcc, s87, v55")
    k("s_add_u32 s85, s85, 1")
    k(f"s_cbranch_vccz {dn}")
    if slp: k(f"s_sleep {slp}")
    poll_issue()
    k("s_cmp_lt_u32 s85, 20000")
    k(f"s_cbranch_scc1 {lp}")
    k(f"{dn}:")
    st(5)
    for hh in range(2):
        k(f"s_add_u32 m0, s88, {UX + 4096*hh}")
        if hh: k("s_add_u32 s86, s86, 4096")
        else: k("s_nop 0")
        for i in range(4):
            k(f"buffer_load_dwordx4 v{4+(i&1)}, s[{S_UX}:{S_UX+3}], s86 offen offset:{1024*i} sc1 lds")
    if stamp: k("v_writelane_b32 v79, s85, 9")
    k(f"{kdone}:")
    VAB, VBB, VYB, VAE, VAO, VB, VY = 4, 5, 6, 7, 8, 9, 10
    ACC, RA, RB, TT = 16, 32, 48, 12
    k("v_and_b32 v11, 31, v2")
    k("v_lshrrev_b32 v12, 5, v2")
    k("v_lshl_add_u32 v11, v12, 2, v11")
    k("v_add_u32 v11, 28, v11")
    k("v_bfe_u32 v13, v11, 1, 3")
    k(f"v_lshlrev_b32 v{VAB}, 7, v11")
    k(f"v_lshl_add_u32 v{VAB}, v13, 4, v{VAB}")
    k(f"v_add_u32 v{VAB}, {UX - 4096 - 3072}, v{VAB}")
    k("v_bfe_u32 v11, v2, 4, 1")
    k("v_and_b32 v13, 3, v2")
    k("v_lshl_add_u32 v11, v11, 2, v13")
    k("v_bfe_u32 v13, v2, 2, 2")
    k("v_lshl_add_u32 v13, v12, 3, v13")
    k("v_sub_u32 v11, v11, v13")
    k(f"v_lshlrev_b32 v{VBB}, 3, v11")
    k(f"v_add_u32 v{VBB}, {LT + 128 - 32}, v{VBB}")
    k(f"v_lshlrev_b32 v{VYB}, 2, v2")
    k(f"v_add_u32 v{VYB}, {YB}, v{VYB}")
    SJ, SX, SO, SB, SC, SY, NX, NO, NB_, NC, NY = 70, 71, 72, 73, 74, 75, 76, 77, 78, 79, 84
    k(f"s_mov_b32 s{SJ}, 31")
    for w in range(8):
        k(f"s_cmp_eq_u32 s{S_W}, {w}")
        k(f"s_cselect_b32 s{SJ}, {jobword(EARLY[w]+LATE[w])}, s{SJ}")
    k("s_bitcmp1_b32 s2, 0")
    ev = k.lab("ev")
    k(f"s_cbranch_scc0 {ev}")
    for w in range(8):
        k(f"s_cmp_eq_u32 s{S_W}, {w}")
        k(f"s_cselect_b32 s{SJ}, {jobword(EARLY2[w]+LATE2[w])}, s{SJ}")
    k(f"{ev}:")
    def decode():
        k(f"s_bfe_u32 s{NX}, s{SJ}, 0x20003")
        k(f"s_and_b32 s{NC}, s{SJ}, 7")
        k(f"s_lshr_b32 s{SJ}, s{SJ}, 5")
        k(f"s_lshl_b32 s{NO}, s{NC}, 12")
        k(f"s_mul_i32 s{NB_}, s{NX}, {LTS}")
        k(f"s_mul_i32 s{NY}, s{NX}, {YS}")
        k(f"s_lshl_b32 s85, s{NC}, 10")
        k(f"s_add_u32 s{NY}, s{NY}, s85")
        k(f"s_lshl_b32 s{NX}, s{NX}, 5")
    def addr():
        k(f"v_xor_b32 v{VAE}, s{SX}, v{VAB}")
        k(f"v_add_u32 v{VB}, s{SB}, v{VBB}")
        k(f"v_add_u32 v{VAE}, s{SO}, v{VAE}")
        k(f"v_xor_b32 v{VAO}, 64, v{VAE}")
    def rds(i):
        if 'a' not in cx: k(f"ds_read_b128 {vr(RA+4*i,4)}, v{VAE if i % 2 == 0 else VAO} offset:{3072-1024*i}")
        if 'b' not in cx:
            k(f"ds_read_b64_tr_b16 {vr(RB+4*i,2)}, v{VB} offset:{128*i+32}")
            k(f"ds_read_b64_tr_b16 {vr(RB+4*i+2,2)}, v{VB} offset:{128*i}")
    decode()
    k(f"s_mov_b32 s{SX}, s{NX}")
    k(f"s_mov_b32 s{SO}, s{NO}")
    k(f"s_mov_b32 s{SB}, s{NB_}")
    addr()
    k("s_waitcnt vmcnt(0) lgkmcnt(0)")
    st(6)
    k("s_barrier")
    st(7)
    nb = k.lab("nb")
    k(f"s_add_u32 s85, s2, s{S_W}")
    k("s_cmp_lg_u32 s85, 0")
    k(f"s_cbranch_scc1 {nb}")
    k.srd(12, 82, 64, WS_EP)
    k(f"s_add_u32 s85, s{S_TAG}, 1")
    k("v_mov_b32 v11, s85")
    k("v_mov_b32 v12, 0")
    k("s_mov_b64 exec, 1")
    k("buffer_store_dword v11, v12, s[12:15], 0 offen sc1")
    k("s_mov_b64 exec, -1")
    k(f"{nb}:")
    for i in range(4): rds(i)
    k("s_waitcnt lgkmcnt(0)")
    job, lp, epi, cdone = k.lab("job"), k.lab("cl"), k.lab("epi"), k.lab("cd")
    k(f"{job}:")
    k(f"s_mov_b32 s{SC}, s{NC}")
    k(f"s_mov_b32 s{SY}, s{NY}")
    decode()
    def body(first):
        k(f"s_sub_u32 s{SO}, s{SO}, 4096")
        k(f"s_add_u32 s{SB}, s{SB}, 512")
        k(f"s_cmp_eq_u32 s{SC}, 0")
        k(f"s_cselect_b32 s{SX}, s{NX}, s{SX}")
        k(f"s_cselect_b32 s{SO}, s{NO}, s{SO}")
        k(f"s_cselect_b32 s{SB}, s{NB_}, s{SB}")
        for i in range(4):
            if not first: k("s_waitcnt lgkmcnt(9)")
            if 'm' not in cx: k(mfma32(ACC, RA+4*i, RB+4*i, "0" if first and i == 0 else ACC))
            if i == 0: addr()
            rds(i)
        k(f"s_sub_u32 s{SC}, s{SC}, 1")
    body(True)
    k(f"s_cbranch_scc1 {epi}")
    k(f"{lp}:")
    body(False)
    k(f"s_cbranch_scc0 {lp}")
    k(f"{epi}:")
    k(f"v_add_u32 v{VY}, s{SY}, v{VYB}")
    k("s_nop 7")
    k("s_nop 1")
    for lv in (3, 2, 1):
        for s in (1, 2, 3):
            k(f"v_cndmask_b32 v{TT+s-1}, v{ACC+4*s+lv}, v{ACC+4*(s-1)+lv}, s[{S_M63}:{S_M63+1}]")
        k(f"v_add_f32_dpp v{ACC+lv-1}, v{ACC+lv}, v{ACC+lv-1} wave_shr:1 row_mask:0xf bank_mask:0xf bound_ctrl:0")
        for s in (1, 2, 3):
            k(f"v_add_f32_dpp v{ACC+4*s+lv-1}, v{TT+s-1}, v{ACC+4*s+lv-1} wave_ror:1 row_mask:0xf bank_mask:0xf")
    for s in range(4):
        if 'd' not in cx: k(f"ds_add_f32 v{VY}, v{ACC+4*s} offset:{256*s}")
    k(f"s_mov_b64 exec, s[{S_M63}:{S_M63+1}]")
    for i in range(3):
        k(f"ds_add_f32 v{VY}, v{ACC+13+i} offset:{772+4*i}")
    k("s_mov_b64 exec, -1")
    k(f"s_cmp_eq_u32 s{NX}, 96")
    k("s_waitcnt lgkmcnt(7)")
    k(f"s_cbranch_scc0 {job}")
    k("s_waitcnt lgkmcnt(0)")
    st(8)
    k("s_barrier")
    k("v_lshrrev_b32 v4, 2, v2")
    k("v_and_b32 v5, 3, v2")
    k("v_lshlrev_b32 v6, 5, v2")
    k(f"v_add_u32 v6, {YB}, v6")
    k("v_lshlrev_b32 v7, 1, v4")
    k("v_and_b32 v7, 7, v7")
    k("v_xor_b32 v7, 1, v7")
    k("v_lshlrev_b32 v7, 4, v7")
    k("v_lshl_add_u32 v7, v4, 9, v7")
    k("v_lshl_add_u32 v7, v5, 2, v7")
    k(f"v_add_u32 v7, {UX}, v7")
    k("v_mul_u32_u24 v8, 40960, v4")
    k("v_lshl_add_u32 v8, v5, 4, v8")
    k(f"s_mov_b32 s85, s{S_W}")
    k("s_and_b32 s84, s2, 1")
    k("s_lshl_b32 s84, s84, 2")
    k("s_sub_u32 s84, 12, s84")
    fl = k.lab("fl")
    k(f"{fl}:")
    k("s_lshr_b32 s86, s85, 2")
    k("s_and_b32 s87, s85, 3")
    k(f"s_mul_i32 s88, s86, {YS}")
    k("s_lshl_b32 s89, s87, 11")
    k("s_add_u32 s88, s88, s89")
    k("v_add_u32 v9, s88, v6")
    k("s_lshl_b32 s88, s86, 5")
    k("v_xor_b32 v10, s88, v7")
    k("s_lshl_b32 s89, s87, 13")
    k("v_add_u32 v10, s89, v10")
    k("v_xor_b32 v11, 16, v10")
    k("ds_read_b128 v[16:19], v9")
    k("ds_read_b128 v[20:23], v9 offset:16")
    k("ds_read2_b32 v[24:25], v10 offset0:0 offset1:32")
    k("ds_read2_b32 v[26:27], v11 offset0:64 offset1:96")
    k(f"s_add_u32 s88, s86, s{S_CH0}")
    k("s_lshl_b32 s88, s88, 6")
    k(f"s_mul_i32 s89, s87, {16*40960}")
    k("s_add_u32 s88, s88, s89")
    k("s_add_u32 s85, s85, 8")
    k("s_waitcnt lgkmcnt(0)")
    for f in range(4):
        k(f"v_lshlrev_b32 v{28+f}, 16, v{24+f}")
        k(f"v_and_b32 v{24+f}, 0xffff0000, v{24+f}")
    for f in range(4):
        k(f"v_add_f32 v{16+f}, v{16+f}, v{28+f}")
        k(f"v_add_f32 v{20+f}, v{20+f}, v{24+f}")
    for i in range(4):
        k(f"v_cvt_pk_bf16_f32 v{28+i}, v{16+2*i}, v{17+2*i}")
    k("s_cmp_lt_u32 s85, s84")
    k(f"buffer_store_dwordx4 v[28:31], v8, s[{S_HT}:{S_HT+3}], s88 offen sc1")
    k(f"s_cbranch_scc1 {fl}")
    if stamp:
        st(10)
        k("s_waitcnt vmcnt(0)")
        st(11)
        k("s_cmp_lg_u32 s2, 8")
        k(f"s_cbranch_scc1 {end}")
        k(f"s_cmp_ge_u32 s{S_W}, 8")
        k.srd(12, 80, 256)
        k(f"s_and_b32 s85, s{S_W}, 3")
        k(f"s_cmp_lg_u32 s85, 0")
        k(f"s_cbranch_scc1 {end}")
        k("v_lshlrev_b32 v8, 2, v2")
        k(f"s_lshl_b32 s85, s{S_W}, 4")
        k("s_mov_b64 exec, 0xffff")
        k("buffer_store_dword v79, v8, s[12:15], s85 offen")
    k("s_waitcnt vmcnt(0)")
    k(f"{end}:")
    k("s_endpgm")
    return k

def stats2_kernel():
    from g import WS_ST2, ST2_B
    k = Kern("stats2_kernel", 64, 256, 8192, vgpr=64)
    end = k.lab("end")
    k("s_cmp_ge_u32 s2, 64")
    k(f"s_cbranch_scc1 {end}")
    k(f"s_load_dwordx2 s[6:7], s[0:1], {KA_WS}")
    k("s_waitcnt lgkmcnt(0)")
    k.srd(12, 6, HT_B, WS_HT)
    k.srd(20, 6, ST2_B, WS_ST2)
    k("v_lshrrev_b32 v1, 4, v0")
    k("v_and_b32 v2, 15, v0")
    k("v_mul_u32_u24 v3, 2560, v1")
    k("v_lshl_add_u32 v3, v2, 2, v3")
    k("s_mul_i32 s3, s2, 40960")
    for i in range(40):
        k(f"buffer_load_dword v{8+i}, v3, s[12:15], s3 offen offset:{64*i}")
    for i in range(4): k(f"v_mov_b32 v{4+i}, 0")
    k("s_waitcnt vmcnt(0)")
    for i in range(40):
        k(f"v_lshlrev_b32 v50, 16, v{8+i}")
        k(f"v_and_b32 v51, 0xffff0000, v{8+i}")
        k("v_add_f32 v4, v4, v50")
        k("v_fmac_f32 v5, v50, v50")
        k("v_add_f32 v6, v6, v51")
        k("v_fmac_f32 v7, v51, v51")
    k("v_lshlrev_b32 v3, 4, v0")
    k("ds_write_b128 v3, v[4:7]")
    k("s_waitcnt lgkmcnt(0)")
    k("s_barrier")
    k("v_cmp_gt_u32 vcc, 32, v0")
    k("s_nop 1")
    k("s_and_saveexec_b64 s[50:51], vcc")
    k(f"s_cbranch_execz {end}")
    k("v_lshlrev_b32 v3, 3, v0")
    for i in range(16):
        k(f"ds_read_b64 {vr(8+2*i,2)}, v3 offset:{256*i}")
    k("s_waitcnt lgkmcnt(0)")
    for i in range(1, 16):
        k(f"v_add_f32 v8, v8, v{8+2*i}")
        k(f"v_add_f32 v9, v9, v{9+2*i}")
    k(f"v_mul_f32 v21, {f2u(1/640)}, v8")
    k(f"v_mul_f32 v22, {f2u(1/640)}, v9")
    k("v_fma_f32 v22, -v21, v21, v22")
    k("v_max_f32 v22, 0, v22")
    rbf(k, 22)
    k("v_add_f32 v22, 0x3727c5ac, v22")
    rbf(k, 22)
    k("v_sqrt_f32 v22, v22")
    k("s_nop 0")
    rbf(k, 22)
    rbf(k, 21)
    k("v_rcp_f32 v29, v22")
    k("v_sub_f32 v28, 0, v21")
    k("v_cvt_pk_bf16_f32 v28, v28, v28")
    k(f"v_mul_f32 v29, {LOG2E | 0x80000000}, v29")
    k("v_mul_f32 v30, v22, v22")
    k("v_mov_b32 v31, 0")
    k("v_and_b32 v29, 0xffffff7f, v29")
    k("v_and_b32 v30, 0xffffff7f, v30")
    k("v_lshlrev_b32 v3, 4, v0")
    k("s_lshl_b32 s3, s2, 9")
    k("buffer_store_dwordx4 v[28:31], v3, s[20:23], s3 offen")
    k("s_waitcnt vmcnt(0)")
    k(f"{end}:")
    k("s_endpgm")
    return k
```

```python
from asmlib import *
from ka import *
from g12 import g12_kernel
import sys
B = dict(isl=2, slp=8, wbar=(0,0,0), hbar=(4,2,0), hst=False)
V = dict(a=dict(), b=dict(cx='a'), c=dict(cx='b'), d=dict(cx='m'), e=dict(cx='d'), f=dict(cx='ab'))
for n, kw in V.items():
    L = [ka_kernel(stamp=True, **kw), stats2_kernel(), g12_kernel(stamp=False, **B)]
    build_file(L, f"t_ka_{n}.s")
```

```python
from asmlib import *
from naive import rbf, XB
from g import mfma32, WS_HT, HT_B, WS_W2T, W_B, LOG2E
from g12 import WS_EP, W2T_B
WS_UX, WS_F1 = 0, 30<<20
UX_B, F1_B = 256*32768, 256*128
LT, LTS, HTB, HTS, RS = 0, 16896, 50688, 14256, 528
UXZ, UX = 93568, 97152
LNB, LNS = UX, 2624
W2B = UX + 8*LNS
YB, YS = HTB, 8192
CAR = 129920
CNT = CAR + 448
PB = 640*128*2
INV2PI = "0.15915494"
import struct
def f2u(x): return struct.unpack("<I", struct.pack("<f", x))[0]

EARLY = {0: [(0,3)], 4: [(0,2),(0,0)], 1: [(1,3)], 5: [(1,2),(1,0)], 2: [(2,3)], 6: [(2,2)], 3: [(0,1),(1,1)], 7: [(2,1),(2,0)]}
LATE = {0: [(0,7)], 4: [(0,5),(0,4)], 1: [(1,7)], 5: [(1,5),(1,4)], 2: [(2,7)], 6: [(2,6),(2,4)], 3: [(0,6),(2,5)], 7: [(1,6)]}
EARLY2 = {0: [(0,3)], 4: [(0,0)], 1: [(1,3)], 5: [(1,0)], 2: [(0,2)], 6: [(0,1)], 3: [(1,2)], 7: [(1,1)]}
LATE2 = {0: [(0,7)], 4: [(0,4)], 1: [(1,7)], 5: [(1,4)], 2: [(0,6)], 6: [(0,5)], 3: [(1,6)], 7: [(1,5)]}
def jobword(jobs):
    w = 0
    for i, (ch, c) in enumerate(jobs): w |= (ch*8 + c) << (5*i)
    w |= 31 << (5*len(jobs))
    assert w < (1 << 32)
    return w

def cmul(d, a, b, t):
    return [f"v_pk_mul_f32 {vr(t,2)}, {vr(a,2)}, {vr(b,2)} op_sel:[0,0] op_sel_hi:[1,0]",
            f"v_pk_fma_f32 {vr(d,2)}, {vr(a,2)}, {vr(b,2)}, {vr(t,2)} op_sel:[1,1,0] op_sel_hi:[0,1,1] neg_lo:[1,0,0]"]
def cexp(d, ea, th, s, t):
    return [f"v_mul_f32 v{t}, {s}, v{ea}", f"v_mul_f32 v{t+1}, {s}, v{th}",
            f"v_exp_f32 v{t}, v{t}", f"v_fract_f32 v{t+1}, v{t+1}",
            f"v_cos_f32 v{d}, v{t+1}", f"v_sin_f32 v{d+1}, v{t+1}", None,
            f"v_pk_mul_f32 {vr(d,2)}, {vr(d,2)}, {vr(t,2)} op_sel:[0,0] op_sel_hi:[1,0]"]
def ilv(k, lists):
    n = max(len(l) for l in lists)
    for i in range(n):
        for l in lists:
            if i < len(l) and l[i] is not None: k(l[i])

S_X, S_D, S_LAR, S_AIM, S_CRE, S_CIM, S_LDT, S_W2, S_UX, S_F1, S_W2T, S_HT = 12, 16, 20, 24, 28, 32, 36, 40, 44, 48, 52, 56
S_W, S_TAG, S_CH0 = 64, 65, 66
S_M63 = 68

def ka_kernel(stamp=False, flagat=(10, 8, 8), pollat=(12, 13), slp=8, name="ka_kernel", cx=""):
    k = Kern(name, 256, 512, 163840, vgpr=80)
    end = k.lab("end")
    stamps = []
    def st(idx):
        if stamp:
            k("s_memtime s[90:91]")
            k("s_waitcnt lgkmcnt(0)")
            k("s_sub_u32 s90, s90, s60")
            k(f"v_writelane_b32 v79, s90, {idx}")
    def rt(idx):
        if stamp:
            k("s_memrealtime s[90:91]")
            k("s_waitcnt lgkmcnt(0)")
            k(f"v_writelane_b32 v78, s90, {idx}")
    k("s_cmp_ge_u32 s2, 256")
    k(f"s_cbranch_scc1 {end}")
    if stamp: k("s_memtime s[60:61]")
    rt(0)
    k(f"s_load_dwordx8 s[4:11], s[0:1], 0")
    k(f"s_load_dwordx4 s[72:75], s[0:1], {KA_CIM}")
    k(f"s_load_dwordx2 s[76:77], s[0:1], {KA_DSK}")
    k(f"s_load_dwordx2 s[78:79], s[0:1], {KA_W2}")
    k(f"s_load_dwordx4 s[80:83], s[0:1], {KA_DBG}")
    k("v_lshrrev_b32 v1, 6, v0")
    k("v_and_b32 v2, 63, v0")
    k(f"v_readfirstlane_b32 s{S_W}, v1")
    k("v_lshlrev_b32 v3, 4, v2")
    k("v_lshlrev_b32 v9, 2, v2")
    for i in range(56, 71): k(f"v_mov_b32 v{i}, 0")
    k("s_lshr_b32 s3, s2, 2")
    k("s_lshl_b32 s3, s3, 5")
    k("s_and_b32 s84, s2, 3")
    k("s_add_u32 s3, s3, s84")
    k(f"s_lshl_b32 s84, s{S_W}, 2")
    k("s_add_u32 s3, s3, s84")
    k("s_mul_i32 s3, s3, 1280")
    k("s_lshr_b32 s84, s2, 1")
    k("s_mul_i32 s84, s84, 5")
    k("s_and_b32 s85, s2, 1")
    k("s_mul_i32 s85, s85, 3")
    k(f"s_add_u32 s{S_CH0}, s84, s85")
    k(f"s_lshl_b32 s84, s{S_CH0}, 8")
    k(f"s_and_b32 s85, s{S_W}, 1")
    k("s_lshl_b32 s85, s85, 7")
    k("s_add_u32 s84, s84, s85")
    k("v_lshlrev_b32 v15, 1, v2")
    k(f"s_lshl_b32 s85, s{S_CH0}, 1")
    k("v_mov_b32 v55, 0")
    k("s_waitcnt lgkmcnt(0)")
    k.srd(S_X, 4, XB)
    k(f"buffer_load_dwordx4 v[4:7], v3, s[{S_X}:{S_X+3}], s3 offen")
    k(f"buffer_load_dword v8, v9, s[{S_X}:{S_X+3}], s3 offen offset:1024")
    k.srd(S_D, 76, 1280)
    k(f"buffer_load_dwordx4 v[10:13], v3, s[{S_D}:{S_D+3}], 0 offen")
    k(f"buffer_load_dword v14, v9, s[{S_D}:{S_D+3}], 0 offen offset:1024")
    k(f"s_add_u32 s86, s82, {WS_EP}")
    k("s_addc_u32 s87, s83, 0")
    k(f"s_load_dword s{S_TAG}, s[86:87], 0")
    k.srd(S_W2, 78, W_B)
    now2 = k.lab("now2")
    k("s_cmp_ge_u32 s2, 216")
    k(f"s_cbranch_scc1 {now2}")
    k("v_mul_u32_u24 v16, 13, v2")
    k("v_lshrrev_b32 v16, 8, v16")
    k("v_mul_u32_u24 v17, 20, v16")
    k("v_sub_u32 v17, v2, v17")
    k("v_mul_u32_u24 v16, 1280, v16")
    k("v_lshl_add_u32 v16, v17, 4, v16")
    k(f"v_add_u32 v17, {3*1280+64}, v3")
    k("s_lshr_b32 s86, s2, 2")
    k(f"s_mul_i32 s86, s86, {32*1280}")
    k("s_and_b32 s87, s2, 3")
    k("s_mul_i32 s87, s87, 320")
    k("s_add_u32 s86, s86, s87")
    k(f"s_mul_i32 s87, s{S_W}, {4*1280}")
    k("s_add_u32 s86, s86, s87")
    k(f"s_mul_i32 s87, s{S_W}, 1280")
    k(f"s_add_u32 m0, s87, {W2B}")
    k("s_nop 0")
    k(f"buffer_load_dwordx4 v16, s[{S_W2}:{S_W2+3}], s86 offen lds")
    k(f"s_add_u32 m0, s87, {W2B+1024}")
    k("s_mov_b64 exec, 0xffff")
    k(f"buffer_load_dwordx4 v17, s[{S_W2}:{S_W2+3}], s86 offen lds")
    k("s_mov_b64 exec, -1")
    k(f"{now2}:")
    k.srd(S_LAR, 6, PB); k.srd(S_AIM, 8, PB); k.srd(S_CRE, 10, PB); k.srd(S_CIM, 72, PB); k.srd(S_LDT, 74, 1280)
    P_LAR, P_AIM, P_LDT, P_CRE, P_CIM = 56, 59, 62, 65, 68
    for c in range(3):
        k(f"buffer_load_short_d16_hi v{P_LAR+c}, v15, s[{S_LAR}:{S_LAR+3}], s84 offen offset:{256*c}")
        k(f"buffer_load_short_d16_hi v{P_AIM+c}, v15, s[{S_AIM}:{S_AIM+3}], s84 offen offset:{256*c}")
        k(f"buffer_load_short_d16_hi v{P_LDT+c}, v55, s[{S_LDT}:{S_LDT+3}], s85 offen offset:{2*c}")
    for c in range(3):
        k(f"buffer_load_short_d16_hi v{P_CRE+c}, v15, s[{S_CRE}:{S_CRE+3}], s84 offen offset:{256*c}")
        k(f"buffer_load_short_d16_hi v{P_CIM+c}, v15, s[{S_CIM}:{S_CIM+3}], s84 offen offset:{256*c}")
    k.srd(S_UX, 82, UX_B, WS_UX)
    k.srd(S_F1, 82, F1_B, WS_F1)
    k.srd(S_W2T, 82, W2T_B, WS_W2T)
    k.srd(S_HT, 82, HT_B, WS_HT)
    k(f"s_mov_b32 s{S_M63}, 0")
    k(f"s_mov_b32 s{S_M63+1}, 0x80000000")
    for i in range(4): k(f"v_mov_b32 v{16+i}, 0")
    k("v_lshlrev_b32 v20, 4, v0")
    k("v_cmp_gt_u32 vcc, 224, v0")
    k(f"v_add_u32 v22, {CAR-UXZ}, v20")
    k(f"v_subrev_u32 v22, 3584, v22")
    k("v_cndmask_b32 v22, v22, v20, vcc")
    k(f"v_add_u32 v22, {UXZ}, v22")
    k("v_cmp_gt_u32 vcc, 256, v0")
    k("s_nop 1")
    k("s_and_saveexec_b64 s[86:87], vcc")
    k("ds_write_b128 v22, v[16:19]")
    k("s_mov_b64 exec, s[86:87]")
    for R in range(3):
        k("v_lshrrev_b32 v20, 1, v0")
        if R: k(f"v_add_u32 v20, {256*R}, v20")
        k("v_mul_u32_u24 v21, 52429, v20")
        k("v_lshrrev_b32 v21, 18, v21")
        k("v_mul_u32_u24 v22, 5, v21")
        k("v_sub_u32 v22, v20, v22")
        k(f"v_lshlrev_b32 v{72+R}, 16, v21")
        k(f"v_lshl_add_u32 v{72+R}, v22, 5, v{72+R}")
        k("v_cmp_lt_u32 vcc, 2, v22")
        k("v_and_b32 v20, 1, v0")
        k(f"v_lshl_add_u32 v{72+R}, v20, 4, v{72+R}")
        k(f"v_add_u32 v20, {32768-96}, v{72+R}")
        k(f"v_cndmask_b32 v{72+R}, v{72+R}, v20, vcc")
    k(f"s_mul_i32 s86, s{S_W}, {LNS}")
    k(f"s_add_u32 s86, s86, {LNB}")
    k("v_lshlrev_b32 v71, 5, v2")
    k("v_add_u32 v71, s86, v71")
    k("v_lshlrev_b32 v54, 3, v2")
    k("v_add_u32 v54, s86, v54")
    k("v_bfe_u32 v20, v2, 2, 2")
    k(f"v_mul_u32_u24 v75, {LNS}, v20")
    k("v_and_b32 v21, 3, v2")
    k("v_lshl_add_u32 v75, v21, 3, v75")
    k("v_lshrrev_b32 v22, 4, v0")
    k("v_lshl_add_u32 v75, v22, 5, v75")
    k(f"v_add_u32 v75, {LNB}, v75")
    k("v_lshrrev_b32 v22, 5, v2")
    k("v_lshl_add_u32 v20, v22, 4, v20")
    k("v_bfe_u32 v22, v2, 4, 1")
    k("v_lshl_add_u32 v20, v22, 2, v20")
    k("v_mul_u32_u24 v53, 320, v20")
    k("v_lshl_add_u32 v53, v21, 3, v53")
    k(f"s_lshl_b32 s86, s{S_W}, 5")
    k(f"s_add_u32 s86, s86, {W2B}")
    k("v_add_u32 v53, s86, v53")
    k("s_cmp_ge_u32 s2, 216")
    k("s_waitcnt vmcnt(17)")
    w15 = k.lab("w15")
    k(f"s_cbranch_scc0 {w15}")
    k("s_waitcnt vmcnt(15)")
    k(f"{w15}:")
    st(0)
    X, DD = 16, 26
    for i in range(5):
        k(f"v_lshlrev_b32 v{X+2*i}, 16, v{4+i}")
        k(f"v_and_b32 v{X+2*i+1}, 0xffff0000, v{4+i}")
    k(f"v_pk_add_f32 v[36:37], {vr(X,2)}, {vr(X+2,2)}")
    k(f"v_pk_mul_f32 v[38:39], {vr(X,2)}, {vr(X,2)}")
    k(f"v_pk_add_f32 v[40:41], {vr(X+4,2)}, {vr(X+6,2)}")
    k(f"v_pk_fma_f32 v[38:39], {vr(X+2,2)}, {vr(X+2,2)}, v[38:39]")
    k(f"v_pk_add_f32 v[36:37], v[36:37], {vr(X+8,2)}")
    k(f"v_pk_fma_f32 v[38:39], {vr(X+4,2)}, {vr(X+4,2)}, v[38:39]")
    k(f"v_pk_add_f32 v[36:37], v[36:37], v[40:41]")
    k(f"v_pk_fma_f32 v[38:39], {vr(X+6,2)}, {vr(X+6,2)}, v[38:39]")
    k(f"v_pk_fma_f32 v[38:39], {vr(X+8,2)}, {vr(X+8,2)}, v[38:39]")
    k("v_add_f32 v36, v36, v37")
    k("v_add_f32 v38, v38, v39")
    fill = []
    for i in range(5):
        fill += [f"v_lshlrev_b32 v{DD+2*i}, 16, v{10+i}", f"v_and_b32 v{DD+2*i+1}, 0xffff0000, v{10+i}"]
    dp = [f"row_shr:{sh} row_mask:0xf bank_mask:0xf bound_ctrl:0" for sh in (1, 2, 4, 8)] + \
         ["row_bcast:15 row_mask:0xa bank_mask:0xf", "row_bcast:31 row_mask:0xc bank_mask:0xf"]
    k(fill.pop(0))
    for d in dp:
        k(fill.pop(0) if fill else "s_nop 0")
        k(f"v_add_f32_dpp v36, v36, v36 {d}")
        k(f"v_add_f32_dpp v38, v38, v38 {d}")
    for f in fill: k(f)
    k("s_nop 0")
    k("v_readlane_b32 s86, v36, 63")
    k("v_readlane_b32 s87, v38, 63")
    k(f"v_mov_b32 v40, {f2u(1/640)}")
    k("s_nop 2")
    k("v_mul_f32 v36, s86, v40")
    k("v_mul_f32 v38, s87, v40")
    k("v_fma_f32 v38, -v36, v36, v38")
    k("v_max_f32 v38, 0, v38")
    rbf(k, 38)
    k("v_add_f32 v38, 0x3727c5ac, v38")
    rbf(k, 38)
    k("v_sqrt_f32 v38, v38")
    rbf(k, 36)
    rbf(k, 38)
    k("v_rcp_f32 v40, v38")
    k("s_nop 0")
    k("v_mul_f32 v41, -v36, v40")
    U = 42
    for i in range(5):
        k(f"v_pk_fma_f32 {vr(U+2*i,2)}, {vr(X+2*i,2)}, v[40:41], v[40:41] op_sel:[0,0,1] op_sel_hi:[1,0,1]")
    for i in range(5):
        k(f"v_pk_fma_f32 {vr(X+2*i,2)}, {vr(U+2*i,2)}, {vr(DD+2*i,2)}, {vr(X+2*i,2)}")
    for i in range(10):
        k(f"v_cvt_pk_bf16_f32 v{28+i}, v{U+i}, v{X+i}")
        if i == 3: k("ds_write_b128 v71, v[28:31]")
        if i == 7: k("ds_write_b128 v71, v[32:35] offset:16")
    k("ds_write_b64 v54, v[36:37] offset:2048")
    k("s_waitcnt vmcnt(0) lgkmcnt(0)")
    k("s_barrier")
    st(1)
    for R in range(2):
        k(f"ds_read_b64_tr_b16 {vr(16+4*R,2)}, v75 offset:{1024*R}")
        k(f"ds_read_b64_tr_b16 {vr(18+4*R,2)}, v75 offset:{1024*R+4*LNS}")
    k(f"ds_read_b64_tr_b16 v[28:29], v53")
    k(f"ds_read_b64_tr_b16 v[30:31], v53 offset:{8*320}")
    k("s_lshl_b32 s86, s2, 7")
    r2, nw = k.lab("r2"), k.lab("nw")
    k(f"s_cmp_ge_u32 s{S_W}, 4")
    k(f"s_cbranch_scc1 {r2}")
    k(f"ds_read_b64_tr_b16 v[24:25], v75 offset:2048")
    k(f"ds_read_b64_tr_b16 v[26:27], v75 offset:{2048+4*LNS}")
    k(f"ds_read_b64_tr_b16 v[32:33], v53 offset:256")
    k(f"ds_read_b64_tr_b16 v[34:35], v53 offset:{8*320+256}")
    k("s_waitcnt lgkmcnt(2)")
    k(f"buffer_store_dwordx4 v[24:27], v74, s[{S_UX}:{S_UX+3}], s86 offen sc1")
    k(f"{r2}:")
    k("s_waitcnt lgkmcnt(0)")
    k(f"buffer_store_dwordx4 v[16:19], v72, s[{S_UX}:{S_UX+3}], s86 offen sc1")
    k(f"buffer_store_dwordx4 v[20:23], v73, s[{S_UX}:{S_UX+3}], s86 offen sc1")
    k("s_cmp_ge_u32 s2, 216")
    k(f"s_cbranch_scc1 {nw}")
    k("s_and_b32 s86, s2, 3")
    k(f"s_mul_i32 s86, s86, {2*54*5*1024}")
    k("s_lshr_b32 s87, s2, 2")
    k("s_mul_i32 s87, s87, 5120")
    k("s_add_u32 s86, s86, s87")
    k(f"s_lshl_b32 s87, s{S_W}, 10")
    k("s_add_u32 s86, s86, s87")
    k(f"s_add_u32 s87, s86, {54*5120-5120}")
    k(f"s_cmp_ge_u32 s{S_W}, 5")
    k("s_cselect_b32 s88, s87, s86")
    k(f"buffer_store_dwordx4 v[28:31], v3, s[{S_W2T}:{S_W2T+3}], s88 offen sc1")
    k(f"s_cmp_ge_u32 s{S_W}, 2")
    k(f"s_cbranch_scc1 {nw}")
    k(f"s_add_u32 s87, s87, 8192")
    k(f"buffer_store_dwordx4 v[32:35], v3, s[{S_W2T}:{S_W2T+3}], s87 offen sc1")
    k(f"{nw}:")
    k("s_barrier")
    st(2)
    rt(1)
    EA = [4, 5, 6]; TH = [7, 8, 9]
    PA = [16, 18, 20]; PBs = [22, 24, 26]; PC = [28, 30, 32]; PD = [34, 36, 38]; PT = [40, 42, 44]; PE = [46, 48, 50]; PK = [10, 11, 12]
    k(f"s_mov_b32 s84, {LOG2E}")
    base = []
    for c in range(3):
        dt = P_LDT + c
        base.append([f"v_mul_f32 v{EA[c]}, s84, v{P_LAR+c}", f"v_mul_f32 v{dt}, s84, v{dt}",
                     f"v_exp_f32 v{EA[c]}, v{EA[c]}", f"v_exp_f32 v{dt}, v{dt}", None,
                     f"v_cvt_pk_bf16_f32 v{EA[c]}, v{EA[c]}, v{EA[c]}", f"v_cvt_pk_bf16_f32 v{dt}, v{dt}, v{dt}",
                     f"v_and_b32 v{EA[c]}, 0xffff0000, v{EA[c]}", f"v_and_b32 v{dt}, 0xffff0000, v{dt}",
                     f"v_mul_f32 v{EA[c]}, v{EA[c]}, v{dt}", f"v_mul_f32 v{TH[c]}, v{P_AIM+c}, v{dt}",
                     f"v_mul_f32 v{EA[c]}, {LOG2E | 0x80000000}, v{EA[c]}", f"v_mul_f32 v{TH[c]}, {INV2PI}, v{TH[c]}"])
    ilv(k, base)
    def flag_step():
        sk = k.lab("nf")
        rt(2)
        k("s_waitcnt vmcnt(0)")
        rt(3)
        k(f"v_mov_b32 v13, {CNT}")
        k("v_mov_b32 v14, 1")
        k("s_mov_b64 exec, 1")
        k("ds_add_rtn_u32 v14, v13, v14")
        k("s_waitcnt lgkmcnt(0)")
        k("v_readfirstlane_b32 s86, v14")
        k(f"s_add_u32 s87, s{S_TAG}, 1")
        k("v_mov_b32 v14, s87")
        k("v_mov_b32 v13, 0")
        k("s_lshl_b32 s87, s2, 7")
        k("s_cmp_lg_u32 s86, 7")
        k(f"s_cbranch_scc1 {sk}")
        k(f"buffer_store_dword v14, v13, s[{S_F1}:{S_F1+3}], s87 offen sc1")
        k(f"{sk}:")
        k("s_mov_b64 exec, -1")
    def wr(c, pair, off, neg):
        return [f"v_cvt_pk_bf16_f32 v{PK[c]}, v{pair}, {'-' if neg else ''}v{pair+1}",
                f"ds_write_addtid_b32 v{PK[c]} offset:{off}"]
    hpath, hb, tdone = k.lab("hp"), k.lab("hb"), k.lab("td")
    k(f"s_and_b32 s85, s{S_W}, 1")
    k("s_lshl_b32 s85, s85, 8")
    k(f"s_cmp_ge_u32 s{S_W}, 4")
    k(f"s_cbranch_scc1 {hpath}")
    k(f"s_bfe_u32 s86, s{S_W}, 0x10001")
    k(f"s_mul_i32 s87, s86, {16*RS}")
    k("s_add_u32 m0, s85, s87")
    k(f"s_mul_i32 s86, s86, {f2u(128.0)}")
    ilv(k, [cexp(PBs[c], EA[c], TH[c], "0x41000000", PT[c]) for c in range(3)])
    ilv(k, [cexp(PA[c], EA[c], TH[c], "s86", PT[c]) for c in range(3)])
    for e in range(16):
        if e == flagat[0]: flag_step()
        ilv(k, [wr(c, PA[c], LT + c*LTS + e*RS, False) + (cmul(PA[c], PA[c], PBs[c], PT[c]) if e < 15 else []) for c in range(3)])
    k(f"s_branch {tdone}")
    k(f"{hpath}:")
    k(f"s_add_u32 m0, s85, {HTB}")
    ilv(k, [[f"v_add_f32 v{P_LDT+c}, v{P_LDT+c}, v{P_LDT+c}", f"v_mul_f32 v{PC[c]}, v{P_CRE+c}, v{P_LDT+c}", f"v_mul_f32 v{PC[c]+1}, v{P_CIM+c}, v{P_LDT+c}"] for c in range(3)])
    k(f"s_and_b32 s88, s{S_W}, 3")
    k("s_lshl_b32 s88, s88, 13")
    k("v_lshlrev_b32 v54, 7, v2")
    def poll_issue():
        k(f"buffer_load_dword v55, v54, s[{S_F1}:{S_F1+3}], s88 offen sc1")
    k(f"s_cmp_ge_u32 s{S_W}, 6")
    k(f"s_cbranch_scc1 {hb}")
    ilv(k, [cexp(PBs[c], EA[c], TH[c], "1.0", PT[c]) for c in range(3)])
    ilv(k, [cexp(PD[c], EA[c], TH[c], "0x43800000", PT[c]) for c in range(3)])
    ilv(k, [cmul(PD[c], PD[c], PC[c], PT[c]) for c in range(3)])
    for e in range(13):
        if e == flagat[1]: flag_step()
        if e == pollat[0]: poll_issue()
        if e < 8:
            ilv(k, [wr(c, PC[c], c*HTS + e*RS, True) + (cmul(PC[c], PC[c], PBs[c], PT[c]) if e < 7 else cmul(PBs[c], PBs[c], PBs[c], PT[c])) for c in range(3)])
        else:
            ilv(k, [wr(c, PD[c], c*HTS + e*RS, True) + (cmul(PD[c], PD[c], PBs[c], PT[c]) if e < 12 else []) for c in range(3)])
    k(f"s_branch {tdone}")
    k(f"{hb}:")
    ilv(k, [cexp(PBs[c], EA[c], TH[c], "4.0", PT[c]) for c in range(3)])
    ilv(k, [cexp(PD[c], EA[c], TH[c], "0x43800000", PT[c]) for c in range(3)])
    ilv(k, [cexp(PA[c], EA[c], TH[c], "0x44000000", PT[c]) for c in range(3)])
    ilv(k, [cmul(PA[c], PA[c], PC[c], PT[c]) + cmul(PE[c], PBs[c], PBs[c], PT[c]) for c in range(3)])
    row = 13
    e = 0
    for blk in range(6):
        mults = [PBs, PE] if blk < 2 else [PE]
        if e <= flagat[2] < e + 1 + len(mults): flag_step()
        if e <= pollat[1] < e + 1 + len(mults): poll_issue()
        e += 1 + len(mults)
        ilv(k, [wr(c, PA[c], c*HTS + row*RS, True) for c in range(3)]); row += 1
        for m in mults:
            ilv(k, [cmul(PC[c], PA[c], m[c], PT[c]) + wr(c, PC[c], c*HTS + row*RS, True) for c in range(3)]); row += 1
        if blk < 5: ilv(k, [cmul(PA[c], PA[c], PD[c], PT[c]) for c in range(3)])
    assert row == 27
    k(f"{tdone}:")
    k("s_waitcnt lgkmcnt(0)")
    st(3)
    k("s_barrier")
    st(4)
    gat, kdone = k.lab("gat"), k.lab("kd")
    k(f"s_cmp_ge_u32 s{S_W}, 4")
    k(f"s_cbranch_scc1 {gat}")
    k(f"s_cmp_ge_u32 s{S_W}, 3")
    k(f"s_cbranch_scc1 {kdone}")
    lg = Cnt(k, "lgkmcnt", 15)
    k("v_and_b32 v4, 31, v2")
    k("v_lshrrev_b32 v5, 5, v2")
    k("v_lshrrev_b32 v6, 3, v4")
    k("v_bfe_u32 v7, v4, 2, 1")
    k("v_and_b32 v8, 3, v4")
    k("v_min_u32 v9, 2, v8")
    k("v_lshl_add_u32 v9, v7, 1, v9")
    k("v_add_u32 v9, 8, v9")
    k("v_lshrrev_b32 v10, 1, v8")
    k("v_add3_u32 v10, v10, v8, v7")
    k("v_add_u32 v10, 13, v10")
    k("v_lshl_add_u32 v11, v8, 1, v7")
    k("v_add_u32 v11, 19, v11")
    k("v_cmp_eq_u32 vcc, 1, v6")
    k("v_cmp_eq_u32 s[86:87], 2, v6")
    k("v_cmp_eq_u32 s[88:89], 3, v6")
    k(f"s_mul_i32 s85, s{S_W}, {HTS}")
    k("v_cndmask_b32 v9, v4, v9, vcc")
    k("v_cndmask_b32 v9, v9, v10, s[86:87]")
    k("v_cndmask_b32 v9, v9, v11, s[88:89]")
    k(f"s_add_u32 s85, s85, {HTB}")
    k(f"v_mul_u32_u24 v9, {RS}, v9")
    k("v_lshl_add_u32 v9, v5, 4, v9")
    k("v_add_u32 v9, s85, v9")
    k(f"s_mul_i32 s85, s{S_W}, {LTS}")
    k(f"v_mul_u32_u24 v10, {RS}, v4")
    k("v_lshl_add_u32 v10, v5, 4, v10")
    k("v_add_u32 v10, s85, v10")
    KA_, NBK = 32, 5
    tg = {}
    def krd(s):
        b = KA_ + 8*(s % NBK)
        k(f"ds_read_b128 {vr(b,4)}, v9 offset:{32*s}"); lg.issue()
        k(f"ds_read_b128 {vr(b+4,4)}, v10 offset:{32*s}"); tg[s] = lg.issue()
    for s in range(NBK): krd(s)
    k("v_lshlrev_b32 v11, 4, v4")
    k("v_lshl_add_u32 v11, v5, 3, v11")
    k("v_add_u32 v11, s85, v11")
    k("v_cmp_eq_u32 s[86:87], 1, v5")
    k("v_mov_b32 v12, 0")
    k("v_mov_b32 v13, 0")
    for s in range(16):
        lg.wait(tg[s])
        b = KA_ + 8*(s % NBK)
        k(mfma32(16, b, b+4, "0" if s == 0 else 16))
        if s + NBK < 16: krd(s + NBK)
    k("s_nop 7")
    k("s_nop 4")
    D = 16
    k(f"v_cvt_pk_bf16_f32 v32, v{D}, v{D+1}")
    k(f"v_cvt_pk_bf16_f32 v33, v{D+2}, v{D+3}")
    k(f"v_cvt_pk_bf16_f32 v34, v{D+4}, v{D+4}")
    k(f"v_cvt_pk_bf16_f32 v35, v{D+5}, v{D+6}")
    k("ds_write_b64 v11, v[32:33] offset:64")
    k(f"v_cndmask_b32 v6, v{D+8}, v{D+9}, s[86:87]")
    k(f"v_cndmask_b32 v7, v{D+10}, v{D+11}, s[86:87]")
    k("ds_write_b64 v11, v[34:35] offset:576")
    k(f"v_cvt_pk_bf16_f32 v36, v{D+8}, v{D+8}")
    k(f"v_cvt_pk_bf16_f32 v37, v6, v{D+9}")
    k(f"v_cvt_pk_bf16_f32 v38, v{D+10}, v{D+10}")
    k(f"v_cvt_pk_bf16_f32 v39, v7, v{D+11}")
    k("ds_write_b64 v11, v[36:37] offset:1088")
    k("ds_write_b64 v11, v[38:39] offset:1600")
    for a in range(4):
        k(f"v_cvt_pk_bf16_f32 v{40+2*a}, v{D+12+a}, v{D+12+a}")
        k(f"v_cvt_pk_bf16_f32 v{41+2*a}, v{D+12+a}, v{D+12+a}")
        k(f"ds_write_b64 v11, {vr(40+2*a,2)} offset:{64+2048+512*a}")
    k("s_mov_b64 exec, 0x55555555")
    for a in range(4):
        k(f"ds_write_b16 v11, v{40+2*a} offset:{64+2048+512*a+8}")
    k("s_mov_b32 exec_lo, 15")
    k("s_mov_b32 exec_hi, 15")
    k("ds_write_b64 v11, v[12:13]")
    k("s_mov_b64 exec, -1")
    k(f"s_branch {kdone}")
    k(f"{gat}:")
    lp, dn = k.lab("pl"), k.lab("pd")
    k("v_lshrrev_b32 v4, 4, v2")
    k("v_and_b32 v5, 7, v2")
    k("v_xor_b32 v4, v4, v5")
    k("v_lshrrev_b32 v5, 3, v2")
    k("v_lshlrev_b32 v5, 7, v5")
    k("v_lshl_add_u32 v4, v4, 4, v5")
    k("v_xor_b32 v5, 64, v4")
    k("s_lshl_b32 s86, s2, 15")
    k("s_add_u32 s86, s86, s88")
    k(f"s_add_u32 s87, s{S_TAG}, 1")
    k("s_mov_b32 s85, 0")
    k(f"{lp}:")
    k("s_waitcnt vmcnt(0)")
    k("v_cmp_ne_u32 vcc, s87, v55")
    k("s_add_u32 s85, s85, 1")
    k(f"s_cbranch_vccz {dn}")
    if slp: k(f"s_sleep {slp}")
    poll_issue()
    k("s_cmp_lt_u32 s85, 20000")
    k(f"s_cbranch_scc1 {lp}")
    k(f"{dn}:")
    st(5)
    rt(4)
    for hh in range(2):
        k(f"s_add_u32 m0, s88, {UX + 4096*hh}")
        if hh: k("s_add_u32 s86, s86, 4096")
        else: k("s_nop 0")
        for i in range(4):
            k(f"buffer_load_dwordx4 v{4+(i&1)}, s[{S_UX}:{S_UX+3}], s86 offen offset:{1024*i} sc1 lds")
    if stamp: k("v_writelane_b32 v79, s85, 9")
    k(f"{kdone}:")
    VAB, VBB, VYB, VAE, VAO, VB, VY = 4, 5, 6, 7, 8, 9, 10
    ACC, RA, RB, TT = 16, 32, 48, 12
    k("v_and_b32 v11, 31, v2")
    k("v_lshrrev_b32 v12, 5, v2")
    k("v_lshl_add_u32 v11, v12, 2, v11")
    k("v_add_u32 v11, 28, v11")
    k("v_bfe_u32 v13, v11, 1, 3")
    k(f"v_lshlrev_b32 v{VAB}, 7, v11")
    k(f"v_lshl_add_u32 v{VAB}, v13, 4, v{VAB}")
    k(f"v_add_u32 v{VAB}, {UX - 4096 - 3072}, v{VAB}")
    k("v_bfe_u32 v11, v2, 4, 1")
    k("v_and_b32 v13, 3, v2")
    k("v_lshl_add_u32 v11, v11, 2, v13")
    k("v_bfe_u32 v13, v2, 2, 2")
    k("v_lshl_add_u32 v13, v12, 3, v13")
    k("v_sub_u32 v11, v11, v13")
    k(f"v_lshlrev_b32 v{VBB}, 3, v11")
    k(f"v_add_u32 v{VBB}, {LT + 128 - 32}, v{VBB}")
    SJ, SX, SO, SB, SC, SR, NX, NO, NB_, NC, NY, NR = 70, 71, 72, 73, 74, 75, 76, 77, 78, 79, 84, 67
    k(f"s_mov_b32 s{SJ}, 31")
    for w in range(8):
        k(f"s_cmp_eq_u32 s{S_W}, {w}")
        k(f"s_cselect_b32 s{SJ}, {jobword(EARLY[w]+LATE[w])}, s{SJ}")
    k("s_bitcmp1_b32 s2, 0")
    ev = k.lab("ev")
    k(f"s_cbranch_scc0 {ev}")
    for w in range(8):
        k(f"s_cmp_eq_u32 s{S_W}, {w}")
        k(f"s_cselect_b32 s{SJ}, {jobword(EARLY2[w]+LATE2[w])}, s{SJ}")
    k(f"{ev}:")
    def decode():
        k(f"s_bfe_u32 s{NX}, s{SJ}, 0x20003")
        k(f"s_and_b32 s{NC}, s{SJ}, 7")
        k(f"s_lshr_b32 s{SJ}, s{SJ}, 5")
        k(f"s_lshl_b32 s{NO}, s{NC}, 12")
        k(f"s_mul_i32 s{NB_}, s{NX}, {LTS}")
        k(f"s_mul_i32 s{NY}, s{NX}, {YS}")
        k(f"s_lshl_b32 s85, s{NC}, 10")
        k(f"s_add_u32 s{NY}, s{NY}, s85")
        k(f"s_mul_i32 s85, s{NX}, 9")
        k(f"s_add_u32 s{NR}, s85, s{NC}")
        k(f"s_lshl_b32 s{NX}, s{NX}, 5")
    def addr():
        k(f"v_xor_b32 v{VAE}, s{SX}, v{VAB}")
        k(f"v_add_u32 v{VB}, s{SB}, v{VBB}")
        k(f"v_add_u32 v{VAE}, s{SO}, v{VAE}")
        k(f"v_xor_b32 v{VAO}, 64, v{VAE}")
    def rds(i):
        if 'a' not in cx: k(f"ds_read_b128 {vr(RA+4*i,4)}, v{VAE if i % 2 == 0 else VAO} offset:{3072-1024*i}")
        if 'b' not in cx:
            k(f"ds_read_b64_tr_b16 {vr(RB+4*i,2)}, v{VB} offset:{128*i+32}")
            k(f"ds_read_b64_tr_b16 {vr(RB+4*i+2,2)}, v{VB} offset:{128*i}")
    decode()
    k(f"s_mov_b32 s{SX}, s{NX}")
    k(f"s_mov_b32 s{SO}, s{NO}")
    k(f"s_mov_b32 s{SB}, s{NB_}")
    addr()
    k("s_waitcnt vmcnt(0) lgkmcnt(0)")
    st(6)
    rt(5)
    k("s_barrier")
    st(7)
    nb = k.lab("nb")
    k(f"s_add_u32 s85, s2, s{S_W}")
    k("s_cmp_lg_u32 s85, 0")
    k(f"s_cbranch_scc1 {nb}")
    k.srd(12, 82, 64, WS_EP)
    k(f"s_add_u32 s85, s{S_TAG}, 1")
    k("v_mov_b32 v11, s85")
    k("v_mov_b32 v12, 0")
    k("s_mov_b64 exec, 1")
    k("buffer_store_dword v11, v12, s[12:15], 0 offen sc1")
    k("s_mov_b64 exec, -1")
    k(f"{nb}:")
    for i in range(4): rds(i)
    k("s_waitcnt lgkmcnt(0)")
    job, lp, epi, cdone = k.lab("job"), k.lab("cl"), k.lab("epi"), k.lab("cd")
    k(f"{job}:")
    k(f"s_mov_b32 s{SC}, s{NC}")
    k(f"s_mov_b32 m0, s{NY}")
    k(f"s_lshl_b32 s{SR}, s{NR}, 4")
    decode()
    def body(first):
        k(f"s_sub_u32 s{SO}, s{SO}, 4096")
        k(f"s_add_u32 s{SB}, s{SB}, 512")
        k(f"s_cmp_eq_u32 s{SC}, 0")
        k(f"s_cselect_b32 s{SX}, s{NX}, s{SX}")
        k(f"s_cselect_b32 s{SO}, s{NO}, s{SO}")
        k(f"s_cselect_b32 s{SB}, s{NB_}, s{SB}")
        for i in range(4):
            if not first: k("s_waitcnt lgkmcnt(9)")
            if 'm' not in cx: k(mfma32(ACC, RA+4*i, RB+4*i, "0" if first and i == 0 else ACC))
            if i == 0: addr()
            rds(i)
        k(f"s_sub_u32 s{SC}, s{SC}, 1")
    body(True)
    k(f"s_cbranch_scc1 {epi}")
    k(f"{lp}:")
    body(False)
    k(f"s_cbranch_scc0 {lp}")
    k(f"{epi}:")
    k(f"s_add_u32 s{SR}, s{SR}, {CAR+16}")
    k(f"v_mov_b32 v{VY}, s{SR}")
    k("s_nop 7")
    k("s_nop 1")
    for lv in (3, 2, 1):
        for s in (1, 2, 3):
            k(f"v_cndmask_b32 v{TT+s-1}, v{ACC+4*s+lv}, v{ACC+4*(s-1)+lv}, s[{S_M63}:{S_M63+1}]")
        k(f"v_add_f32_dpp v{ACC+lv-1}, v{ACC+lv}, v{ACC+lv-1} wave_shr:1 row_mask:0xf bank_mask:0xf bound_ctrl:0")
        for s in (1, 2, 3):
            k(f"v_add_f32_dpp v{ACC+4*s+lv-1}, v{TT+s-1}, v{ACC+4*s+lv-1} wave_ror:1 row_mask:0xf bank_mask:0xf")
    for s in range(4):
        k(f"ds_write_addtid_b32 v{ACC+4*s} offset:{YB+256*s}")
    k(f"s_mov_b64 exec, s[{S_M63}:{S_M63+1}]")
    k(f"ds_write_b128 v{VY}, {vr(ACC+12,4)}")
    k("s_mov_b64 exec, -1")
    k(f"s_cmp_eq_u32 s{NX}, 96")
    k("s_waitcnt lgkmcnt(5)")
    k(f"s_cbranch_scc0 {job}")
    k("s_waitcnt lgkmcnt(0)")
    st(8)
    k("s_barrier")
    k("v_lshrrev_b32 v4, 2, v2")
    k("v_and_b32 v5, 3, v2")
    k("v_lshlrev_b32 v6, 5, v2")
    k(f"v_add_u32 v6, {YB}, v6")
    k("v_lshlrev_b32 v7, 1, v4")
    k("v_and_b32 v7, 7, v7")
    k("v_xor_b32 v7, 1, v7")
    k("v_lshlrev_b32 v7, 4, v7")
    k("v_lshl_add_u32 v7, v4, 9, v7")
    k("v_lshl_add_u32 v7, v5, 2, v7")
    k(f"v_add_u32 v7, {UX}, v7")
    k("v_mul_u32_u24 v8, 40960, v4")
    k("v_lshl_add_u32 v8, v5, 4, v8")
    k("v_lshrrev_b32 v13, 5, v2")
    k("v_lshlrev_b32 v13, 4, v13")
    k(f"v_add_u32 v13, {CAR}, v13")
    k(f"s_mov_b32 s85, s{S_W}")
    k("s_and_b32 s84, s2, 1")
    k("s_lshl_b32 s84, s84, 2")
    k("s_sub_u32 s84, 12, s84")
    fl = k.lab("fl")
    k(f"{fl}:")
    k("s_lshr_b32 s86, s85, 2")
    k("s_and_b32 s87, s85, 3")
    k(f"s_mul_i32 s88, s86, {YS}")
    k("s_lshl_b32 s89, s87, 11")
    k("s_add_u32 s88, s88, s89")
    k("v_add_u32 v9, s88, v6")
    k("s_lshl_b32 s88, s86, 5")
    k("v_xor_b32 v10, s88, v7")
    k("s_lshl_b32 s89, s87, 13")
    k("v_add_u32 v10, s89, v10")
    k("v_xor_b32 v11, 16, v10")
    k("ds_read_b128 v[16:19], v9")
    k("ds_read_b128 v[20:23], v9 offset:16")
    k("ds_read2_b32 v[24:25], v10 offset0:0 offset1:32")
    k("ds_read2_b32 v[26:27], v11 offset0:64 offset1:96")
    k("s_mul_i32 s88, s86, 144")
    k("s_lshl_b32 s89, s87, 5")
    k("s_add_u32 s88, s88, s89")
    k("v_add_u32 v12, s88, v13")
    k("ds_read_b128 v[32:35], v12")
    k(f"s_add_u32 s88, s86, s{S_CH0}")
    k("s_lshl_b32 s88, s88, 6")
    k(f"s_mul_i32 s89, s87, {16*40960}")
    k("s_add_u32 s88, s88, s89")
    k("s_add_u32 s85, s85, 8")
    k("s_waitcnt lgkmcnt(0)")
    for f in range(4):
        k(f"v_lshlrev_b32 v{28+f}, 16, v{24+f}")
        k(f"v_and_b32 v{24+f}, 0xffff0000, v{24+f}")
    for f in range(4):
        k(f"v_add_f32 v{16+f}, v{16+f}, v{28+f}")
        k(f"v_add_f32 v{20+f}, v{20+f}, v{24+f}")
    k("s_mov_b32 exec_lo, 1")
    k("s_mov_b32 exec_hi, 1")
    for f in range(3): k(f"v_add_f32 v{16+f}, v{16+f}, v{33+f}")
    k("s_mov_b64 exec, -1")
    for i in range(4):
        k(f"v_cvt_pk_bf16_f32 v{28+i}, v{16+2*i}, v{17+2*i}")
    k("s_cmp_lt_u32 s85, s84")
    k(f"buffer_store_dwordx4 v[28:31], v8, s[{S_HT}:{S_HT+3}], s88 offen sc1")
    k(f"s_cbranch_scc1 {fl}")
    if stamp:
        st(10)
        k("s_waitcnt vmcnt(0)")
        st(11)
        rt(6)
        k.srd(12, 82, 1<<20, 40<<20)
        k("v_lshlrev_b32 v8, 2, v2")
        k(f"s_lshl_b32 s85, s2, 3")
        k(f"s_add_u32 s85, s85, s{S_W}")
        k(f"s_lshl_b32 s85, s85, 5")
        k("s_mov_b64 exec, 0xff")
        k("buffer_store_dword v78, v8, s[12:15], s85 offen")
        k("s_mov_b64 exec, -1")
        k("s_cmp_lg_u32 s2, 8")
        k(f"s_cbranch_scc1 {end}")
        k(f"s_cmp_ge_u32 s{S_W}, 8")
        k.srd(12, 80, 256)
        k(f"s_and_b32 s85, s{S_W}, 3")
        k(f"s_cmp_lg_u32 s85, 0")
        k(f"s_cbranch_scc1 {end}")
        k("v_lshlrev_b32 v8, 2, v2")
        k(f"s_lshl_b32 s85, s{S_W}, 4")
        k("s_mov_b64 exec, 0xffff")
        k("buffer_store_dword v79, v8, s[12:15], s85 offen")
    k("s_waitcnt vmcnt(0)")
    k(f"{end}:")
    k("s_endpgm")
    return k

def stats2_kernel():
    from g import WS_ST2, ST2_B
    k = Kern("stats2_kernel", 64, 256, 8192, vgpr=64)
    end = k.lab("end")
    k("s_cmp_ge_u32 s2, 64")
    k(f"s_cbranch_scc1 {end}")
    k(f"s_load_dwordx2 s[6:7], s[0:1], {KA_WS}")
    k("s_waitcnt lgkmcnt(0)")
    k.srd(12, 6, HT_B, WS_HT)
    k.srd(20, 6, ST2_B, WS_ST2)
    k("v_lshrrev_b32 v1, 4, v0")
    k("v_and_b32 v2, 15, v0")
    k("v_mul_u32_u24 v3, 2560, v1")
    k("v_lshl_add_u32 v3, v2, 2, v3")
    k("s_mul_i32 s3, s2, 40960")
    for i in range(40):
        k(f"buffer_load_dword v{8+i}, v3, s[12:15], s3 offen offset:{64*i}")
    for i in range(4): k(f"v_mov_b32 v{4+i}, 0")
    k("s_waitcnt vmcnt(0)")
    for i in range(40):
        k(f"v_lshlrev_b32 v50, 16, v{8+i}")
        k(f"v_and_b32 v51, 0xffff0000, v{8+i}")
        k("v_add_f32 v4, v4, v50")
        k("v_fmac_f32 v5, v50, v50")
        k("v_add_f32 v6, v6, v51")
        k("v_fmac_f32 v7, v51, v51")
    k("v_lshlrev_b32 v3, 4, v0")
    k("ds_write_b128 v3, v[4:7]")
    k("s_waitcnt lgkmcnt(0)")
    k("s_barrier")
    k("v_cmp_gt_u32 vcc, 32, v0")
    k("s_nop 1")
    k("s_and_saveexec_b64 s[50:51], vcc")
    k(f"s_cbranch_execz {end}")
    k("v_lshlrev_b32 v3, 3, v0")
    for i in range(16):
        k(f"ds_read_b64 {vr(8+2*i,2)}, v3 offset:{256*i}")
    k("s_waitcnt lgkmcnt(0)")
    for i in range(1, 16):
        k(f"v_add_f32 v8, v8, v{8+2*i}")
        k(f"v_add_f32 v9, v9, v{9+2*i}")
    k(f"v_mul_f32 v21, {f2u(1/640)}, v8")
    k(f"v_mul_f32 v22, {f2u(1/640)}, v9")
    k("v_fma_f32 v22, -v21, v21, v22")
    k("v_max_f32 v22, 0, v22")
    rbf(k, 22)
    k("v_add_f32 v22, 0x3727c5ac, v22")
    rbf(k, 22)
    k("v_sqrt_f32 v22, v22")
    k("s_nop 0")
    rbf(k, 22)
    rbf(k, 21)
    k("v_rcp_f32 v29, v22")
    k("v_sub_f32 v28, 0, v21")
    k("v_cvt_pk_bf16_f32 v28, v28, v28")
    k(f"v_mul_f32 v29, {LOG2E | 0x80000000}, v29")
    k("v_mul_f32 v30, v22, v22")
    k("v_mov_b32 v31, 0")
    k("v_and_b32 v29, 0xffffff7f, v29")
    k("v_and_b32 v30, 0xffffff7f, v30")
    k("v_lshlrev_b32 v3, 4, v0")
    k("s_lshl_b32 s3, s2, 9")
    k("buffer_store_dwordx4 v[28:31], v3, s[20:23], s3 offen")
    k("s_waitcnt vmcnt(0)")
    k(f"{end}:")
    k("s_endpgm")
    return k
```

```python
from asmlib import *
from ka import *
from g12 import g12_kernel
B = dict(isl=2, slp=8, wbar=(0,0,0), hbar=(4,2,0), hst=False)
a, s, g = ka_kernel(), stats2_kernel(), g12_kernel(stamp=False, **B)
build_file([a, s, g], "h_a.s")
build_file([a, a, s, g], "h_b.s")
build_file([a, s, s, g], "h_c.s")
build_file([a, s, g, g], "h_d.s")
build_file([a, s, g, a, s, g], "h_e.s")
```
